```python
import torch

def _softmax(x, axis=-1):
    return torch.softmax(x, dim=axis)
def _gelu(x):
    return torch.nn.functional.gelu(x, approximate="tanh")
def _silu(x):
    return torch.nn.functional.silu(x)
def _sigmoid(x):
    return torch.sigmoid(x)
def _layernorm(x, axis=-1, eps=1e-5):
    m = x.mean(dim=axis, keepdim=True)
    v = x.var(dim=axis, keepdim=True, unbiased=False)
    return (x - m) / torch.sqrt(v + eps)
def _scatter_add(tgt, idx, src, axis=0):
    return tgt.clone().index_add_(axis, idx, src)
def _segment_sum(src, seg, n):
    out = torch.zeros((n,) + src.shape[1:], dtype=src.dtype)
    return out.index_add_(0, seg, src)
def _pad(x, pw):
    flat = tuple(v for pair in reversed(pw) for v in pair)
    return torch.nn.functional.pad(x, flat)

kernel_name = 'interleave_layers__sliding_block__glu_gated_bilinear__prompt'

def setup_inputs():

    _w = (lambda a: (lambda t: t.to(torch.bfloat16) if t.is_floating_point() else t)(torch.as_tensor(a)))
    def _A_setup():
        B, S, D = 1, 2048, 512
        return {
            "x": _w((lambda *s: torch.randn(*s, dtype=torch.bfloat16) * 0.05)(B, S, D)),
            "wqkv": _w((lambda *s: torch.randn(*s, dtype=torch.bfloat16) * 0.05)(D, 3 * D)),
            "wo": _w((lambda *s: torch.randn(*s, dtype=torch.bfloat16) * 0.05)(D, D)),
        }
    _A_in = _A_setup()

    def _B_setup():
        B, S, D, F = 1, 2048, 512, 1792
        return {
            "x": _w((lambda *s: torch.randn(*s, dtype=torch.bfloat16) * 0.05)(B, S, D)),
            "w_gate": _w((lambda *s: torch.randn(*s, dtype=torch.bfloat16) * 0.8)(D, F) * (D ** -0.5)),
            "w_up": _w((lambda *s: torch.randn(*s, dtype=torch.bfloat16) * 0.8)(D, F) * (D ** -0.5)),
            "w_down": _w((lambda *s: torch.randn(*s, dtype=torch.bfloat16) * 0.8)(F, D) * (F ** -0.5)),
        }
    _B_in = _B_setup()

    return {
        "A_x": _A_in["x"],
        "A_wqkv": _A_in["wqkv"],
        "A_wo": _A_in["wo"],
        "B_x": _B_in["x"],
        "B_w_gate": _B_in["w_gate"],
        "B_w_up": _B_in["w_up"],
        "B_w_down": _B_in["w_down"],
    }

def reference(A_x, A_wqkv, A_wo, B_x, B_w_gate, B_w_up, B_w_down):
    def _A_ref(x, wqkv, wo):
        B, S, D = x.shape
        H = 32; Dh = D // H; W = 256
        qkv = (lambda x, *d: x.permute(*d))((x @ wqkv).reshape(B, S, 3, H, Dh), 2, 0, 3, 1, 4)
        q, k, v = qkv[0], qkv[1], qkv[2]
        scores = torch.einsum("bhqd,bhkd->bhqk", q, k) * (Dh ** -0.5)
        idx = torch.arange(S)
        mask = (idx[:, None] - idx[None, :] >= 0) & (idx[:, None] - idx[None, :] < W)
        scores = torch.where(mask[None, None], scores, -1e9)
        p = _softmax(scores, axis=-1)
        o = torch.einsum("bhqk,bhkd->bhqd", p, v)
        return (lambda x, *d: x.permute(*d))(o, 0, 2, 1, 3).reshape(B, S, D) @ wo

    def _B_ref(x, w_gate, w_up, w_down):
        g = torch.einsum("bsd,df->bsf", x, w_gate)
        u = torch.einsum("bsd,df->bsf", x, w_up)
        h = g * u
        return torch.einsum("bsf,fd->bsd", h, w_down)

    x = A_x
    x = x + _A_ref(_layernorm(x, axis=-1), A_wqkv, A_wo)
    x = x + _B_ref(_layernorm(x, axis=-1), B_w_gate, B_w_up, B_w_down)
    x = x + _A_ref(_layernorm(x, axis=-1), A_wqkv, A_wo)
    x = x + _B_ref(_layernorm(x, axis=-1), B_w_gate, B_w_up, B_w_down)
    return x
```

```python
import re

TRANS = ("v_exp_f32", "v_rcp_f32", "v_rsq_f32", "v_log_f32", "v_sqrt_f32")
_reg_re = re.compile(r"^(-?\|?)([vas])(\d+|\[(\d+):(\d+)\])\|?$")


def v(i, n=1):
    return f"v{i}" if n == 1 else f"v[{i}:{i + n - 1}]"


def a(i, n=1):
    return f"a{i}" if n == 1 else f"a[{i}:{i + n - 1}]"


def s(i, n=1):
    return f"s{i}" if n == 1 else f"s[{i}:{i + n - 1}]"


def regs_of(op):
    op = op.strip()
    if op in ("vcc", "exec"):
        return {(op, 0)}
    if op in ("vcc_lo", "vcc_hi"):
        return {("vcc", 0)}
    if op in ("exec_lo", "exec_hi"):
        return {("exec", 0)}
    if op == "m0":
        return {("m0", 0)}
    m = _reg_re.match(op)
    if not m:
        return set()
    k = m.group(2)
    if m.group(4) is not None:
        lo, hi = int(m.group(4)), int(m.group(5))
        if k in "va" and hi > lo:
            assert lo % 2 == 0, f"unaligned tuple {op}"
        return {(k, i) for i in range(lo, hi + 1)}
    return {(k, int(m.group(3)))}


class Ins:
    __slots__ = ("op", "kind", "w", "r", "rc", "pos", "wide", "ab")

    def __init__(self, op, kind, w, r, rc=frozenset(), wide=False):
        self.op, self.kind, self.w, self.r, self.rc, self.wide = op, kind, w, r, rc, wide
        self.pos = 0


def isv(x):
    return x[0] in "va" and x[0] != "vcc" and len(x[0]) == 1


def classify(text):
    t = text.strip()
    parts = t.split(None, 1)
    op = parts[0]
    rest = parts[1] if len(parts) > 1 else ""
    for mod in (" op_sel", " neg_", " offset", " sc0", " sc1", " nt", " glc", " clamp"):
        k = rest.find(mod)
        if k >= 0:
            rest = rest[:k]
    if op.startswith("s_getreg"):
        rest = rest.split(",")[0]
    ops = [x.strip() for x in rest.split(",")] if rest else []
    R = [regs_of(o) for o in ops]
    U = lambda lst: set().union(*lst) if lst else set()
    if op.startswith("v_mfma"):
        return Ins(op, "mfma", R[0], R[1] | R[2], rc=R[3])
    if op.startswith("v_permlane"):
        return Ins(op, "perm", R[0] | R[1], R[0] | R[1])
    if op.startswith("v_readfirstlane") or op.startswith("v_readlane"):
        return Ins(op, "readlane", R[0], U(R[1:]))
    if op.startswith("v_cmp"):
        return Ins(op, "valu", R[0], U(R[1:]))
    if op.startswith("v_"):
        r = U(R[1:])
        if op.startswith(("v_fmac", "v_mac", "v_pk_fmac", "v_dot2c")):
            r = r | R[0]
        if op.startswith("v_cndmask") and len(ops) == 3:
            r = r | {("vcc", 0)}
        base = op.replace("_e32", "").replace("_e64", "")
        return Ins(op, "trans" if base in TRANS else "valu", R[0], r)
    if op.startswith("global_load_lds"):
        return Ins(op, "dma", set(), U(R) | {("m0", 0)})
    if op.startswith("global_load"):
        return Ins(op, "vload", R[0], U(R[1:]))
    if op.startswith("global_store"):
        return Ins(op, "vstore", set(), U(R), rc=R[1], wide=("x4" in op or "x3" in op))
    if op.startswith("global_atomic"):
        return Ins(op, "vstore", set(), U(R))
    if op.startswith("ds_read"):
        return Ins(op, "dsread", R[0], U(R[1:]))
    if op.startswith("ds_write"):
        return Ins(op, "dswrite", set(), U(R))
    if op.startswith("s_load"):
        return Ins(op, "smem", R[0], U(R[1:]))
    if op in ("s_waitcnt", "s_barrier", "s_nop", "s_endpgm", "s_setprio"):
        return Ins(op, "misc", set(), set())
    if op.startswith(("s_cbranch", "s_branch")):
        return Ins(op, "branch", set(), set())
    if op.startswith("s_cmp") or op.startswith("s_bitcmp"):
        return Ins(op, "salu", set(), U(R))
    if op.startswith("s_getreg"):
        return Ins(op, "salu", R[0], set())
    if op.startswith("s_"):
        return Ins(op, "salu", R[0], U(R[1:]))
    raise ValueError("unclassified: " + text)


VALU_KINDS = ("valu", "trans", "perm", "readlane")


def need_states(p, c):
    n = 0
    pk, ck = p.kind, c.kind
    cr = c.r | c.rc
    pw_v = {x for x in p.w if isv(x)}
    pw_s = p.w - pw_v
    if pk in VALU_KINDS:
        if pw_v:
            if ck == "mfma" and pw_v & cr:
                n = max(n, 2)
            if ck == "perm" and pw_v & cr:
                n = max(n, 2)
            if ck == "readlane" and pw_v & cr:
                n = max(n, 1)
            if pk == "trans" and ck in VALU_KINDS and ck != "trans" and pw_v & cr:
                n = max(n, 1)
            if pk == "trans" and ck == "trans" and pw_v & cr:
                n = max(n, 1)
        if pw_s:
            if ck in VALU_KINDS + ("mfma",) and pw_s & cr:
                n = max(n, 2)
            if ck == "readlane" and pw_s & cr:
                n = max(n, 4)
            if ck in ("vload", "vstore", "dma") and pw_s & cr:
                n = max(n, 5)
            if ("exec", 0) in pw_s and ck != "salu":
                n = max(n, 5)
    if pk == "mfma":
        if ck == "mfma":
            if p.w & c.rc and p.w != c.rc:
                n = max(n, 10)
            if p.w & c.r:
                n = max(n, 12)
            if p.w & c.w and p.w != c.rc:
                n = max(n, 12)
        elif ck in VALU_KINDS:
            if p.w & (cr | c.w):
                n = max(n, 12)
            if p.rc & c.w:
                n = max(n, 7)
        elif ck in ("vload", "vstore", "dma", "dsread", "dswrite"):
            if p.w & (cr | c.w):
                n = max(n, 12)
            if p.rc & c.w:
                n = max(n, 7)
    if pk == "salu" and ("m0", 0) in p.w and ck == "dma":
        n = max(n, 1)
    if pk == "vstore" and p.wide and ck in VALU_KINDS + ("mfma",) and p.rc & c.w:
        n = max(n, 2)
    return n


class Emitter:
    def __init__(self):
        self.lines = []
        self.hist = []
        self.pos = 0
        self.vm_n = 0
        self.vm_done = 0
        self.lg_n = 0
        self.lg_done = 0
        self.pend = {}
        self.snaps = {}
        self.nops = 0
        self.ninstr = 0
        self.uid = 0

    def raw(self, text):
        self.lines.append(text)

    def comment(self, text):
        self.lines.append("; " + text)

    def newlabel(self, base):
        self.uid += 1
        return f"L_{base}_{self.uid}"

    def _wait(self, vm=None, lg=None):
        t = []
        if vm is not None:
            n = min(self.vm_n - vm - 1, 63)
            if vm >= self.vm_done:
                t.append(f"vmcnt({n})")
                self.vm_done = self.vm_n - n
        if lg is not None:
            n = min(self.lg_n - lg - 1, 15)
            if lg >= self.lg_done:
                t.append(f"lgkmcnt({n})")
                self.lg_done = self.lg_n - n
        if t:
            self._plain("s_waitcnt " + " ".join(t))

    def wait_vm(self, tok):
        if tok is not None and tok >= 0:
            self._wait(vm=tok)

    def wait_lg(self, tok):
        if tok is not None and tok >= 0:
            self._wait(lg=tok)

    def wait_vm_all(self):
        self._plain("s_waitcnt vmcnt(0)")
        self.vm_done = self.vm_n

    def wait_lg_all(self):
        self._plain("s_waitcnt lgkmcnt(0)")
        self.lg_done = self.lg_n

    def wait_all(self):
        self._plain("s_waitcnt vmcnt(0) lgkmcnt(0)")
        self.vm_done = self.vm_n
        self.lg_done = self.lg_n

    def _plain(self, text, states=1):
        self.lines.append("\t" + text)
        self.pos += states
        self.ninstr += 1

    def nop(self, states):
        while states > 0:
            k = min(states, 16)
            self._plain(f"s_nop {k - 1}", k)
            self.nops += 1
            states -= k

    def __call__(self, text):
        c = classify(text)
        vm = lg = None
        touch = c.r | c.rc | c.w
        for x in touch:
            pd = self.pend.get(x)
            if pd is None:
                continue
            kind, seq = pd
            if kind == "vm":
                if seq < self.vm_done:
                    del self.pend[x]
                    continue
                if c.kind == "vload" and x in c.w and x not in c.r:
                    continue
                vm = seq if vm is None else max(vm, seq)
            else:
                if seq < self.lg_done:
                    del self.pend[x]
                    continue
                if c.kind == "dsread" and x in c.w and x not in c.r:
                    continue
                lg = seq if lg is None else max(lg, seq)
        if vm is not None or lg is not None:
            self._wait(vm, lg)
        need = 0
        for p in self.hist:
            gap = self.pos - p.pos - 1
            if gap >= 12:
                continue
            n = need_states(p, c) - gap
            if n > need:
                need = n
        if need > 0:
            self.nop(need)
        c.pos = self.pos
        self._plain(text)
        self.hist.append(c)
        if len(self.hist) > 40:
            self.hist = [p for p in self.hist if self.pos - p.pos <= 14]
        tok = None
        if c.kind in ("vload", "vstore", "dma"):
            tok = self.vm_n
            self.vm_n += 1
            if c.kind == "vload":
                for x in c.w:
                    self.pend[x] = ("vm", tok)
        elif c.kind in ("dsread", "dswrite", "smem"):
            tok = self.lg_n
            self.lg_n += 1
            if c.kind in ("dsread", "smem"):
                for x in c.w:
                    self.pend[x] = ("lg", tok)
        return tok

    def flush_haz(self):
        need = 0
        for p in self.hist:
            age = self.pos - p.pos - 1
            if p.kind == "mfma":
                need = max(need, 12 - age)
            elif p.kind in VALU_KINDS:
                need = max(need, 5 - age)
            elif p.kind in ("salu", "vstore"):
                need = max(need, 2 - age)
        if need > 0:
            self.nop(need)
        self.hist = []

    def branch(self, op, label):
        self._plain(f"{op} {label}")
        self.snaps.setdefault(label, []).append(([(p, self.pos - p.pos) for p in self.hist]))

    def label(self, label):
        self.lines.append(label + ":")
        for snap in self.snaps.pop(label, []):
            for p, age in snap:
                q = Ins(p.op, p.kind, p.w, p.r, p.rc, p.wide)
                q.pos = self.pos - age
                self.hist.append(q)

    def loop_label(self, label):
        self.flush_haz()
        self.lines.append(label + ":")

    def back_branch(self, op, label):
        self.flush_haz()
        self._plain(f"{op} {label}")

    def save_cnt(self):
        return (self.vm_n, self.vm_done, self.lg_n, self.lg_done, dict(self.pend))

    def restore_cnt(self, st):
        self.vm_n, self.vm_done, self.lg_n, self.lg_done = st[:4]
        self.pend = dict(st[4])

    def either(self, cond_branch_op, emit_taken, emit_fall):
        lt, le = self.newlabel("alt"), self.newlabel("join")
        self.branch(cond_branch_op, lt)
        st = self.save_cnt()
        h0 = list(self.hist)
        emit_fall()
        st1 = self.save_cnt()
        self.branch("s_branch", le)
        self.restore_cnt(st)
        self.hist = []
        self.label(lt)
        emit_taken()
        st2 = self.save_cnt()
        assert st1[0] == st2[0] and st1[2] == st2[2], "unbalanced variants"
        self.vm_done = min(st1[1], st2[1])
        self.lg_done = min(st1[3], st2[3])
        for k, val in st1[4].items():
            if k not in self.pend or self.pend[k][1] < val[1]:
                self.pend[k] = val
        self.label(le)

    def text(self):
        return "\n".join(self.lines) + "\n"
```

```python
from asmlib import v, a, s
from gen import *

MF = "v_mfma_f32_32x32x16_bf16"
S_BG = 64
S_RW = 66
S_WQW = 67
NEG = "0xf149f2ca"


def lds_addr(off):
    if off < 57344:
        return v(V_O), off
    return v(V_RHI), off - 57344


def wq_prefetch(g):
    e = g.e
    g.base(B3, S_WS, WQ, [(S_J, 98304), (S_W, 24576)])
    e(f"s_mul_i32 {s(S_WQW)}, {s(S_W)}, 24576")
    tok = None
    for p in range(24):
        if p % 4 == 0:
            e(f"s_add_u32 m0, {s(S_WQW)}, {L_WQ + (p >> 2) * 4096}")
        vo, imm = g.frag_addr(p)
        tok = e(f"global_load_lds_dwordx4 {vo}, {s(B3, 2)} offset:{imm}")
    g.wq_tok = tok


def ring_setup(g):
    e = g.e
    g.base(S_BG, S_WS, WG, [(S_J, 229376), (S_W, 7168)])
    e(f"s_mul_i32 {s(S_RW)}, {s(S_W)}, 7168")


def ring_dma_ops(g, c):
    e = g.e
    ops = []

    def piece(p):
        def f():
            if p % 4 == 0:
                e(f"s_add_u32 m0, {s(S_RW)}, {L_RING + (c % 4) * 28672 + (p >> 2) * 4096}")
            vo, imm = g.frag_addr(p)
            tok = e(f"global_load_lds_dwordx4 {vo}, {s(S_BG, 2)} offset:{imm}")
            if p == 6:
                g.ring_tok[c] = tok
                g.bump(S_BG, 28672)
        return f
    return [piece(p) for p in range(7)]


def load_stats(g, stoff, vdst):
    e = g.e
    g.base(B1, S_WS, stoff, [(S_T, 4096)])
    for f in range(16):
        e(f"global_load_dword {v(vdst + f)}, {v(V_L4)}, {s(B1, 2)} offset:{f * 256}")


def finish_stats(g, vsrc, vr):
    e = g.e
    for st in (8, 4, 2):
        for f in range(0, st, 2):
            e(f"v_pk_add_f32 {v(vsrc + f, 2)}, {v(vsrc + f, 2)}, {v(vsrc + f + st, 2)}")
    e(f"v_add_f32 {v(vsrc)}, {v(vsrc)}, {v(vsrc + 1)}")
    e(f"v_mov_b32 {v(vsrc + 1)}, {v(vsrc)}")
    e(f"v_permlane32_swap_b32 {v(vsrc)}, {v(vsrc + 1)}")
    e(f"v_mul_f32 {v(vsrc)}, 0x3b000000, {v(vsrc)}")
    e(f"v_mul_f32 {v(vsrc + 1)}, 0x3b000000, {v(vsrc + 1)}")
    e(f"v_fma_f32 {v(vsrc + 1)}, -{v(vsrc)}, {v(vsrc)}, {v(vsrc + 1)}")
    e(f"v_max_f32 {v(vsrc + 1)}, 0, {v(vsrc + 1)}")
    e(f"v_add_f32 {v(vsrc + 1)}, 0x3727c5ac, {v(vsrc + 1)}")
    e(f"v_rsq_f32 {v(vr)}, {v(vsrc + 1)}")


def phaseQ(g, L):
    e = g.e
    AK, AV, AQ = 32, 48, 64
    WB = 80
    VKA, VNEG = 104, 105
    VST = 112
    VR, VRQ = 128, 130
    VRT = 132
    KF, VF, QF = 148, 156, 164
    SB = [32, 48]
    PB = [64, 72]
    OA = [176, 192]
    KB = [80, 84]
    VB = [88, 96]
    CD, CZ, CO = 208, 224, 240
    VVA = [172, 173]
    VVS = [174, 175]
    xin, stin = (XB[0], ST[0]) if L == 0 else (XB[2], ST[2])
    if L == 0:
        wq_prefetch(g)
    else:
        g.await_cluster(3)
    g.stamp(f"Q{L} sync")
    g.base(B0, S_WS, xin, [(S_T, 32768)])
    for k in range(32):
        g.load_frag(a(4 * k, 4), B0, k)
    load_stats(g, stin, VST)
    if L == 0:
        g.base(B2, S_WS, XB[0], [(S_TF, 32768), (S_CTF, 2048)])
        e(f"global_load_dwordx4 {v(V_RES, 4)}, {v(V_O)}, {s(B2, 2)}")
        e(f"global_load_dwordx4 {v(V_RES + 4, 4)}, {v(V_O)}, {s(B2, 2)} offset:1024")
    tn, th, tu = V_T, V_T + 1, V_T + 2
    e(f"v_and_b32 {v(tn)}, 31, {v(V_LANE)}")
    e(f"v_lshrrev_b32 {v(th)}, 5, {v(V_LANE)}")
    e(f"v_mov_b32 {v(VNEG)}, {NEG}")
    e(f"v_lshlrev_b32 {v(tu)}, 2, {v(th)}")
    e(f"v_sub_u32 {v(tu)}, {v(tn)}, {v(tu)}")
    for r in range(16):
        kk = 8 * (r >> 2) + (r & 3)
        e(f"v_cmp_gt_i32 vcc, {kk}, {v(tu)}")
        e(f"v_cndmask_b32 {v(CD + r)}, 0, {v(VNEG)}, vcc")
        e(f"v_mov_b32 {v(CZ + r)}, 0")
        e(f"v_sub_f32 {v(CO + r)}, {v(VNEG)}, {v(CD + r)}")
    lab = e.newlabel("oldok")
    e(f"s_cmp_ge_u32 {s(S_T)}, 8")
    e.branch("s_cbranch_scc1", lab)
    for r in range(16):
        e(f"v_mov_b32 {v(CO + r)}, {v(VNEG)}")
    e.label(lab)
    ones = V_T + 4
    for r in range(4):
        e(f"v_mov_b32 {v(ones + r)}, 0x3f803f80")
    e(f"v_add_u32 {v(V_T + 3)}, {L_ONES}, {v(V_O)}")
    e(f"ds_write_b128 {v(V_T + 3)}, {v(ones, 4)}")
    e(f"ds_write_b128 {v(V_T + 3)}, {v(ones, 4)} offset:1024")
    e(f"s_lshl_b32 {s(T0)}, {s(S_W)}, 12")
    e(f"s_add_u32 {s(T0)}, {s(T0)}, {L_KV}")
    e(f"v_add_u32 {v(VKA)}, {s(T0)}, {v(V_O)}")
    t0, t1, t2 = V_T + 3, V_T + 8, V_T + 9
    e(f"v_and_b32 {v(t0)}, 15, {v(tn)}")
    e(f"v_subrev_u32 {v(t0)}, 4, {v(t0)}")
    e(f"v_cmp_gt_u32 vcc, 8, {v(t0)}")
    e(f"v_mov_b32 {v(t1)}, 64")
    e(f"v_cndmask_b32 {v(t1)}, 0, {v(t1)}, vcc")
    e(f"v_add_u32 {v(t1)}, {L_ONES}, {v(t1)}")
    e(f"v_add_u32 {v(t2)}, {8 * 4096 + 2048}, {v(VKA)}")
    e(f"v_mov_b32 {v(t0)}, 4096")
    e(f"v_cmp_gt_u32 vcc, 16, {v(tn)}")
    e(f"v_cndmask_b32 {v(VVA[0])}, {v(t1)}, {v(t2)}, vcc")
    e(f"v_cndmask_b32 {v(VVA[1])}, {v(t2)}, {v(t1)}, vcc")
    e(f"v_cndmask_b32 {v(VVS[0])}, 0, {v(t0)}, vcc")
    e(f"v_sub_u32 {v(VVS[1])}, {v(t0)}, {v(VVS[0])}")
    e.wait_vm(g.wq_tok)
    e.wait_lg_all()
    e("s_barrier")
    g.stamp(f"Q{L} W ready")

    def rdw(k, slot, dst):
        va, imm = lds_addr(L_WQ + k * 3072 + slot * 1024)
        e(f"ds_read_b128 {v(dst, 4)}, {va} offset:{imm}")
    for k in range(2):
        rdw(k, 0, WB + 8 * k)
        rdw(k, 1, WB + 8 * k + 4)
    for k in range(32):
        b, nb = WB + 8 * (k % 3), WB + 8 * ((k + 2) % 3)
        if k + 2 < 32:
            rdw(k + 2, 0, nb)
        e(f"{MF} {v(AK, 16)}, {v(b, 4)}, {a(4 * k, 4)}, {v(AK, 16) if k else 0}")
        if k + 2 < 32:
            rdw(k + 2, 1, nb + 4)
        e(f"{MF} {v(AV, 16)}, {a(4 * k, 4)}, {v(b + 4, 4)}, {v(AV, 16) if k else 0}")
    g.stamp(f"Q{L} kv gemm")
    for k in range(3):
        rdw(k, 2, WB + 4 * k)
    finish_stats(g, VST, VR)
    e(f"v_mul_f32 {v(VRQ)}, 0x3eb8aa3b, {v(VR)}")
    e(f"s_lshl_b32 {s(T0)}, {s(S_W)}, 8")
    e(f"s_add_u32 {s(T0)}, {s(T0)}, {L_RS}")
    e(f"v_add_u32 {v(V_T + 3)}, {s(T0)}, {v(V_L4)}")
    e(f"ds_write_b32 {v(V_T + 3)}, {v(VR)}")
    e(f"v_lshlrev_b32 {v(V_T + 4)}, 4, {v(th)}")
    e(f"v_add_u32 {v(V_T + 4)}, {s(T0)}, {v(V_T + 4)}")
    e.wait_lg_all()
    for q in range(4):
        e(f"ds_read_b128 {v(VRT + 4 * q, 4)}, {v(V_T + 4)} offset:{q * 32}")
    for r in range(0, 16, 2):
        e(f"v_pk_mul_f32 {v(AK + r, 2)}, {v(AK + r, 2)}, {v(VR, 2)} op_sel_hi:[1,0]")
    for r in range(8):
        e(f"v_cvt_pk_bf16_f32 {v(KF + r)}, {v(AK + 2 * r)}, {v(AK + 2 * r + 1)}")
    e(f"v_add_u32 {v(V_T + 3)}, {8 * 4096}, {v(VKA)}")
    g.base(B2, S_WS, KV[L], [(S_T, 65536), (S_J, 4096)])
    for q in range(2):
        e(f"global_store_dwordx4 {v(V_O)}, {v(KF + 4 * q, 4)}, {s(B2, 2)} offset:{q * 1024} sc1")
        e(f"ds_write_b128 {v(V_T + 3)}, {v(KF + 4 * q, 4)} offset:{q * 1024}")
    for r in range(0, 16, 2):
        e(f"v_pk_mul_f32 {v(AV + r, 2)}, {v(AV + r, 2)}, {v(VRT + r, 2)}")
    for r in range(8):
        e(f"v_cvt_pk_bf16_f32 {v(VF + r)}, {v(AV + 2 * r)}, {v(AV + 2 * r + 1)}")
    kvtok = None
    for q in range(2):
        kvtok = e(f"global_store_dwordx4 {v(V_O)}, {v(VF + 4 * q, 4)}, {s(B2, 2)} offset:{2048 + q * 1024} sc1")
        e(f"ds_write_b128 {v(V_T + 3)}, {v(VF + 4 * q, 4)} offset:{2048 + q * 1024}")
    g.stamp(f"Q{L} kv stored")
    g.base(B4, S_WS, HF + L * 4096, [(S_J, 256), (S_T, 4)])
    for k in range(32):
        if k + 3 < 32:
            rdw(k + 3, 2, WB + 4 * ((k + 3) & 3))
        e(f"{MF} {v(AQ, 16)}, {v(WB + 4 * (k & 3), 4)}, {a(4 * k, 4)}, {v(AQ, 16) if k else 0}")
        if k == 26:
            e.wait_vm(kvtok)
            e(f"v_mov_b32 {v(V_T + 8)}, 1")
            e(f"v_mov_b32 {v(V_T + 9)}, 0")
            e("s_mov_b64 exec, 1")
            e(f"global_store_dword {v(V_T + 9)}, {v(V_T + 8)}, {s(B4, 2)} sc1")
            e("s_mov_b64 exec, -1")
    for q in range(2):
        e(f"s_lshl_b32 {s(T0)}, {s(S_W)}, 1")
        e(f"s_add_u32 {s(T0)}, {s(T0)}, {q}")
        e(f"s_lshl_b32 {s(T1)}, {s(S_I)}, 2")
        e(f"s_add_u32 {s(T2)}, {s(T1)}, {s(T0)}")
        e(f"s_sub_u32 {s(T2)}, {s(T2)}, 8")
        e(f"s_and_b32 {s(T0)}, {s(T0)}, 3")
        e(f"s_add_u32 {s(T1)}, {s(T1)}, {s(T0)}")
        e(f"s_cmp_lt_i32 {s(T2)}, 0")
        e(f"s_cselect_b32 {s(T4 + q)}, {s(T1)}, {s(T2)}")
    for r in range(0, 16, 2):
        e(f"v_pk_mul_f32 {v(AQ + r, 2)}, {v(AQ + r, 2)}, {v(VRQ, 2)} op_sel_hi:[1,0]")
    for r in range(8):
        e(f"v_cvt_pk_bf16_f32 {v(QF + r)}, {v(AQ + 2 * r)}, {v(AQ + 2 * r + 1)}")
    g.stamp(f"Q{L} q done")
    e(f"s_lshl_b32 {s(T0)}, {s(T5)}, 2")
    e(f"s_lshl_b32 {s(T1)}, {s(T4)}, 2")
    e(f"v_mov_b32 {v(V_T + 3)}, {s(T0)}")
    e("s_mov_b64 exec, 1")
    e(f"v_mov_b32 {v(V_T + 3)}, {s(T1)}")
    e("s_mov_b64 exec, -1")
    g.base(B4, S_WS, HF + L * 4096, [(S_J, 256)])
    g.poll(B4, v(V_T + 3), 1)
    g.stamp(f"Q{L} halo flags")
    e(f"s_lshl_b32 {s(T0)}, {s(S_W)}, 13")
    for q in range(2):
        g.base(B2, S_WS, KV[L], [(T4 + q, 65536), (S_J, 4096)])
        e(f"s_add_u32 m0, {s(T0)}, {L_KV + q * 4096}")
        for p in range(4):
            e(f"global_load_lds_dwordx4 {v(V_O)}, {s(B2, 2)} offset:{p * 1024}")
    e.wait_all()
    e("s_barrier")
    g.stamp(f"Q{L} halo landed")
    for b in range(2):
        e(f"s_xor_b32 {s(T0)}, {s(S_CTF)}, {b}")
        g.base(B2, S_WS, WO, [(T0, 32768), (S_W, 8192)])
        for k in range(8):
            g.load_frag(a(128 + (b * 8 + k) * 4, 4), B2, k)

    def cblk(d):
        return CD if d == 0 else (CO if d == 8 else CZ)

    def rdk(n):
        d, h = n >> 1, n & 1
        e(f"ds_read_b128 {v(KB[n & 1], 4)}, {v(VKA)} offset:{(8 - d) * 4096 + h * 1024}")

    def smf(n):
        d, h = n >> 1, n & 1
        if h == 0 and 1 <= d <= 7:
            lab = e.newlabel("czok")
            e(f"s_cmp_lg_u32 {s(S_T)}, {d - 1}")
            e.branch("s_cbranch_scc1", lab)
            for r in range(16):
                e(f"v_mov_b32 {v(CZ + r)}, {v(VNEG)}")
            e.label(lab)
        e(f"{MF} {v(SB[n & 1], 16)}, {v(KB[n & 1], 4)}, {v(QF + 4 * h, 4)}, {v(cblk(d), 16)}")

    def pv(n, sp):
        h = n & 1
        first = (n < 2 and sp == 0)
        e(f"{MF} {v(OA[h], 16)}, {v(VB[n & 1] + 4 * sp, 4)}, {v(PB[n & 1] + 4 * sp, 4)}, {0 if first else v(OA[h], 16)}")

    rdk(0)
    rdk(1)
    smf(0)
    for n in range(18):
        S = SB[n & 1]
        h = n & 1
        if n + 1 < 18:
            smf(n + 1)
        for r in range(16):
            e(f"v_exp_f32 {v(S + r)}, {v(S + r)}")
            if r == 3:
                if n >= 1:
                    pv(n - 1, 0)
                if n + 2 < 18:
                    rdk(n + 2)
            if r == 9:
                for sp in range(2):
                    e(f"ds_read_b128 {v(VB[n & 1] + 4 * sp, 4)}, {v(VVA[h])} offset:{sp * 1024}")
                if n >= 1:
                    pv(n - 1, 1)
            if r == 12 and n < 16:
                e(f"v_sub_u32 {v(VVA[h])}, {v(VVA[h])}, {v(VVS[h])}")
        for r in range(8):
            e(f"v_cvt_pk_bf16_f32 {v(PB[n & 1] + r)}, {v(S + 2 * r)}, {v(S + 2 * r + 1)}")
    pv(17, 0)
    pv(17, 1)
    g.stamp(f"Q{L} attn")
    LR = [OA[0] + 8, OA[1]]
    fb, norm = f"L_fallback_{L}", f"L_norm_{L}"
    e(f"v_min_f32 {v(V_T + 3)}, {v(LR[0])}, {v(LR[1])}")
    e(f"v_max_f32 {v(V_T + 4)}, {v(LR[0])}, {v(LR[1])}")
    e(f"v_cmp_o_f32 vcc, {v(LR[0])}, {v(LR[1])}")
    e(f"s_mov_b64 {s(S_M1, 2)}, vcc")
    e(f"v_cmp_le_f32 vcc, 0x21800000, {v(V_T + 3)}")
    e(f"s_and_b64 {s(S_M1, 2)}, {s(S_M1, 2)}, vcc")
    e(f"v_cmp_ge_f32 vcc, 0x5d800000, {v(V_T + 4)}")
    e(f"s_and_b64 {s(S_M1, 2)}, {s(S_M1, 2)}, vcc")
    e(f"s_cmp_eq_u64 {s(S_M1, 2)}, exec")
    if g.force_fallback:
        e.branch("s_branch", fb)
    else:
        e.branch("s_cbranch_scc0", fb)
    e.flush_haz()
    e.raw(f"{norm}:")
    e.snaps.pop(fb, None)
    VRL = V_T + 4
    g.base(B2, S_WS, OB[L], [(S_T, 32768), (S_J, 2048)])
    OF = KF
    for h in range(2):
        ob = OA[h] + 8 * h
        e(f"v_rcp_f32 {v(VRL)}, {v(LR[h])}")
        for r in range(0, 8, 2):
            e(f"v_pk_mul_f32 {v(ob + r, 2)}, {v(ob + r, 2)}, {v(VRL, 2)} op_sel_hi:[1,0]")
        for r in range(4):
            e(f"v_cvt_pk_bf16_f32 {v(OF + 4 * h + r)}, {v(ob + 2 * r)}, {v(ob + 2 * r + 1)}")

    def st(sc):
        for h in range(2):
            e(f"global_store_dwordx4 {v(V_O)}, {v(OF + 4 * h, 4)}, {s(B2, 2)} offset:{h * 1024}{sc}")
    g.store_modal(st)
    g.signal(4 * L + 0)
    g.stamp(f"Q{L} signalled")
    g.deferred.append(lambda: fallback(g, L, fb, norm, QF, OA, CD, CO, VKA, VVA, VVS, VNEG, SB, PB, KB, VB))


def fallback(g, L, fb, norm, QF, OA, CD, CO, VKA, VVA, VVS, VNEG, SB, PB, KB, VB):
    e = g.e
    e.hist = []
    e.pend = {}
    e.raw(f"{fb}:")
    e.flush_haz()
    e.nop(12)
    e.wait_lg_all()
    S, P, K, V = SB[0], PB[0], KB[0], VB[0]
    VM, VA2, VV2 = SB[1], SB[1] + 2, SB[1] + 3
    e(f"s_min_u32 {s(T0)}, {s(S_T)}, 7")

    def tile(h, c, pas):
        e(f"ds_read_b128 {v(K, 4)}, {v(VA2)}")
        if pas:
            for sp in range(2):
                e(f"ds_read_b128 {v(V + 4 * sp, 4)}, {v(VV2)} offset:{sp * 1024}")
        e(f"{MF} {v(S, 16)}, {v(K, 4)}, {v(QF + 4 * h, 4)}, {c}")
        if not pas:
            for r in range(0, 16, 2):
                e(f"v_max3_f32 {v(VM)}, {v(VM)}, {v(S + r)}, {v(S + r + 1)}")
        else:
            for r in range(16):
                e(f"v_sub_f32 {v(S + r)}, {v(S + r)}, {v(VM)}")
            for r in range(16):
                e(f"v_exp_f32 {v(S + r)}, {v(S + r)}")
            for r in range(8):
                e(f"v_cvt_pk_bf16_f32 {v(P + r)}, {v(S + 2 * r)}, {v(S + 2 * r + 1)}")
            for sp in range(2):
                e(f"{MF} {v(OA[h], 16)}, {v(V + 4 * sp, 4)}, {v(P + 4 * sp, 4)}, {v(OA[h], 16)}")
            e(f"v_sub_u32 {v(VV2)}, {v(VV2)}, {v(VVS[h])}")
        e(f"v_subrev_u32 {v(VA2)}, 4096, {v(VA2)}")

    for h in range(2):
        for pas in range(2):
            e(f"v_add_u32 {v(VA2)}, {8 * 4096 + h * 1024}, {v(VKA)}")
            if pas == 0:
                e(f"v_mov_b32 {v(VM)}, {v(VNEG)}")
            else:
                e(f"v_lshlrev_b32 {v(VV2)}, 3, {v(VVS[h])}")
                e(f"v_add_u32 {v(VV2)}, {v(VV2)}, {v(VVA[h])}")
                for r in range(16):
                    e(f"v_mov_b32 {v(OA[h] + r)}, 0")
            tile(h, v(CD, 16), pas)
            lp, done = e.newlabel("fbl"), e.newlabel("fbd")
            e(f"s_mov_b32 {s(T1)}, 0")
            e.loop_label(lp)
            e(f"s_cmp_ge_u32 {s(T1)}, {s(T0)}")
            e.branch("s_cbranch_scc1", done)
            tile(h, "0", pas)
            e(f"s_add_u32 {s(T1)}, {s(T1)}, 1")
            e.wait_lg_all()
            e.back_branch("s_branch", lp)
            e.label(done)
            e.flush_haz()
            e.nop(12)
            lab = e.newlabel("fbo")
            e(f"s_cmp_lt_u32 {s(S_T)}, 8")
            e.branch("s_cbranch_scc1", lab)
            tile(h, v(CO, 16), pas)
            e.wait_lg_all()
            e.label(lab)
            e.flush_haz()
            e.nop(12)
            if pas == 0:
                e(f"v_mov_b32 {v(VM + 1)}, {v(VM)}")
                e(f"v_permlane32_swap_b32 {v(VM)}, {v(VM + 1)}")
                e(f"v_max_f32 {v(VM)}, {v(VM)}, {v(VM + 1)}")
    e.flush_haz()
    e.nop(12)
    e.raw(f"\ts_branch {norm}")


def gemm64_finish(g, L, kind):
    e = g.e
    ACC, TMP = 32, 96
    for sl in range(1, 4):
        e(f"s_xor_b32 {s(T0)}, {s(S_W)}, {sl}")
        e(f"s_mul_i32 {s(T0)}, {s(T0)}, 12288")
        e(f"s_add_u32 {s(T0)}, {s(T0)}, {L_RED + (sl - 1) * 4096}")
        e(f"v_add_u32 {v(V_T + sl)}, {s(T0)}, {v(V_O)}")
    for sl in range(1, 4):
        for q in range(4):
            e(f"ds_write_b128 {v(V_T + sl)}, {v(ACC + 16 * sl + 4 * q, 4)} offset:{q * 1024}")
    e(f"s_mul_i32 {s(T0)}, {s(S_W)}, 12288")
    e(f"s_add_u32 {s(T0)}, {s(T0)}, {L_RED}")
    e(f"v_add_u32 {v(V_T)}, {s(T0)}, {v(V_O)}")
    e.wait_lg_all()
    e("s_barrier")
    for sl in range(3):
        for q in range(4):
            e(f"ds_read_b128 {v(TMP + 16 * sl + 4 * q, 4)}, {v(V_T)} offset:{sl * 4096 + q * 1024}")
    for sl in range(3):
        for r in range(0, 16, 2):
            e(f"v_pk_add_f32 {v(ACC + r, 2)}, {v(ACC + r, 2)}, {v(TMP + 16 * sl + r, 2)}")
    final = (kind == "D" and L == 1)
    for r in range(8):
        e(f"v_cvt_pk_bf16_f32 {v(V_RES + r)}, {v(ACC + 2 * r)}, {v(ACC + 2 * r + 1)}")
    if final:
        for sp in range(2):
            e(f"v_permlane32_swap_b32 {v(V_RES + 4 * sp)}, {v(V_RES + 4 * sp + 2)}")
            e(f"v_permlane32_swap_b32 {v(V_RES + 4 * sp + 1)}, {v(V_RES + 4 * sp + 3)}")
        e(f"v_and_b32 {v(V_T)}, 31, {v(V_LANE)}")
        e(f"v_lshlrev_b32 {v(V_T)}, 10, {v(V_T)}")
        e(f"v_lshrrev_b32 {v(V_T + 1)}, 5, {v(V_LANE)}")
        e(f"v_lshl_add_u32 {v(V_T)}, {v(V_T + 1)}, 4, {v(V_T)}")
        g.base(B2, S_OUT, 0, [(S_TF, 32768), (S_CTF, 64)])
        for sp in range(2):
            e(f"global_store_dwordx4 {v(V_T)}, {v(V_RES + 4 * sp, 4)}, {s(B2, 2)} offset:{sp * 32}")
        return
    nb = (1 if kind == "O" else 2) + 2 * L
    g.base(B2, S_WS, XB[nb], [(S_TF, 32768), (S_CTF, 2048)])
    g.base(B3, S_WS, ST[nb], [(S_TF, 4096), (S_CTF, 256)])
    sm, sq = TMP, TMP + 2
    e(f"v_pk_add_f32 {v(sm, 2)}, {v(ACC, 2)}, {v(ACC + 2, 2)}")
    e(f"v_pk_mul_f32 {v(sq, 2)}, {v(ACC, 2)}, {v(ACC, 2)}")
    for r in range(2, 16, 2):
        if r > 2:
            e(f"v_pk_add_f32 {v(sm, 2)}, {v(sm, 2)}, {v(ACC + r, 2)}")
        e(f"v_pk_fma_f32 {v(sq, 2)}, {v(ACC + r, 2)}, {v(ACC + r, 2)}, {v(sq, 2)}")
    e(f"v_add_f32 {v(sm)}, {v(sm)}, {v(sm + 1)}")
    e(f"v_add_f32 {v(sq)}, {v(sq)}, {v(sq + 1)}")
    e(f"v_permlane32_swap_b32 {v(sm)}, {v(sq)}")
    e(f"v_add_f32 {v(sm)}, {v(sm)}, {v(sq)}")

    def st(sc):
        for sp in range(2):
            e(f"global_store_dwordx4 {v(V_O)}, {v(V_RES + 4 * sp, 4)}, {s(B2, 2)} offset:{sp * 1024}{sc}")
        e(f"global_store_dword {v(V_L4)}, {v(sm)}, {s(B3, 2)}{sc}")
    g.store_modal(st)
    g.signal(4 * L + (1 if kind == "O" else 3))


def init_acc_from_res(g):
    e = g.e
    for d in range(8):
        e(f"v_lshlrev_b32 {v(32 + 2 * d)}, 16, {v(V_RES + d)}")
        e(f"v_and_b32 {v(32 + 2 * d + 1)}, 0xffff0000, {v(V_RES + d)}")


def phaseO(g, L):
    e = g.e
    init_acc_from_res(g)
    ring_setup(g)
    g.await_cluster(4 * L + 0)
    g.stamp(f"O{L} sync")
    for aa in range(2):
        e(f"s_xor_b32 {s(T0)}, {s(S_TF)}, {aa}")
        g.base(B0 + 2 * aa, S_WS, OB[L], [(T0, 32768), (S_W, 8192)])
    for k in range(8):
        for aa in range(2):
            g.load_frag(a(192 + (aa * 8 + k) * 4, 4), B0 + 2 * aa, k)
    g.ring_tok = {}
    for c in range(4):
        for op in ring_dma_ops(g, c):
            op()
    for k in range(8):
        for b in range(2):
            for aa in range(2):
                sl = aa + 2 * b
                acc = v(32 + 16 * sl, 16)
                c = acc if (k or sl == 0) else "0"
                e(f"{MF} {acc}, {a(128 + (b * 8 + k) * 4, 4)}, {a(192 + (aa * 8 + k) * 4, 4)}, {c}")
    g.stamp(f"O{L} gemm")
    gemm64_finish(g, L, "O")
    g.stamp(f"O{L} signalled")


def phaseG(g, L):
    e = g.e
    ACC, WB, VST, VR = 32, 144, 200, 216
    nb = 1 + 2 * L
    g.await_cluster(4 * L + 1)
    g.stamp(f"G{L} sync")
    g.base(B0, S_WS, XB[nb], [(S_T, 32768)])
    for k in range(32):
        g.load_frag(a(4 * k, 4), B0, k)
    load_stats(g, ST[nb], VST)
    for b in range(2):
        e(f"s_xor_b32 {s(T0)}, {s(S_CTF)}, {b}")
        g.base(B2 + 2 * b, S_WS, WD, [(T0, 114688), (S_W, 28672)])

    def rdw(k, t):
        off = L_RING + ((k >> 2) & 3) * 28672 + (k & 3) * 7168 + t * 1024
        va, imm = lds_addr(off)
        e(f"ds_read_b128 {v(WB + 28 * (k & 1) + 4 * t, 4)}, {va} offset:{imm}")

    e("s_barrier")
    for t in range(7):
        rdw(0, t)
    wd_list = [(b, k) for k in range(16) for b in range(2)]
    fill = []
    for k in range(32):
        c = k >> 2
        if (k & 3) == 3 and c + 1 < 8:
            if c + 1 >= 4:
                e.wait_vm(g.ring_tok[c + 1])
            e("s_barrier")
            if c >= 1 and c + 3 < 8:
                fill = ring_dma_ops(g, c + 3)
        for t in range(7):
            e(f"{MF} {v(ACC + 16 * t, 16)}, {v(WB + 28 * (k & 1) + 4 * t, 4)}, {a(4 * k, 4)}, {v(ACC + 16 * t, 16) if k else 0}")
            if k + 1 < 32:
                rdw(k + 1, t)
            if t in (1, 4):
                if fill:
                    fill.pop(0)()
                elif k >= 16 and wd_list and c >= 5:
                    b, kk = wd_list.pop(0)
                    g.load_frag(a(128 + (kk * 2 + b) * 4, 4), B2 + 2 * b, kk)
                    if wd_list:
                        b, kk = wd_list.pop(0)
                        g.load_frag(a(128 + (kk * 2 + b) * 4, 4), B2 + 2 * b, kk)
    assert not fill
    while wd_list:
        b, kk = wd_list.pop(0)
        g.load_frag(a(128 + (kk * 2 + b) * 4, 4), B2 + 2 * b, kk)
    g.stamp(f"G{L} gemm")
    finish_stats(g, VST, VR)
    e(f"v_mul_f32 {v(VR)}, {v(VR)}, {v(VR)}")
    g.base(B0, S_WS, HB[L], [(S_T, 114688), (S_J, 7168)])
    HF_ = WB
    for t in range(7):
        A = ACC + 16 * t
        for r in range(0, 8, 2):
            e(f"v_pk_mul_f32 {v(A + r, 2)}, {v(A + r, 2)}, {v(A + 8 + r, 2)}")
        for r in range(0, 8, 2):
            e(f"v_pk_mul_f32 {v(A + r, 2)}, {v(A + r, 2)}, {v(VR, 2)} op_sel_hi:[1,0]")
        for r in range(4):
            e(f"v_cvt_pk_bf16_f32 {v(HF_ + 4 * t + r)}, {v(A + 2 * r)}, {v(A + 2 * r + 1)}")

    def st(sc):
        for t in range(7):
            vo, imm = g.frag_addr(t)
            e(f"global_store_dwordx4 {vo}, {v(HF_ + 4 * t, 4)}, {s(B0, 2)} offset:{imm}{sc}")
    g.store_modal(st)
    g.signal(4 * L + 2)
    g.stamp(f"G{L} signalled")


def phaseD(g, L):
    e = g.e
    init_acc_from_res(g)
    g.await_cluster(4 * L + 2)
    g.stamp(f"D{L} sync")
    for aa in range(2):
        e(f"s_xor_b32 {s(T0)}, {s(S_TF)}, {aa}")
        g.base(B0 + 2 * aa, S_WS, HB[L], [(T0, 114688), (S_W, 28672)])
    for b in range(2):
        e(f"s_xor_b32 {s(T0)}, {s(S_CTF)}, {b}")
        g.base(58 + 2 * b, S_WS, WD, [(T0, 114688), (S_W, 28672)])

    def ldh(k):
        for aa in range(2):
            g.load_frag(a(((k & 15) * 2 + aa) * 4, 4), B0 + 2 * aa, k)

    def ldw(k):
        for b in range(2):
            g.load_frag(a(128 + ((k & 15) * 2 + b) * 4, 4), 58 + 2 * b, k)
    for k in range(16):
        ldh(k)
    for k in range(28):
        for b in range(2):
            for aa in range(2):
                sl = aa + 2 * b
                acc = v(32 + 16 * sl, 16)
                c = acc if (k or sl == 0) else "0"
                e(f"{MF} {acc}, {a(128 + ((k & 15) * 2 + b) * 4, 4)}, {a(((k & 15) * 2 + aa) * 4, 4)}, {c}")
        if k + 16 < 28:
            ldh(k + 16)
            ldw(k + 16)
        if L == 0 and k == 12:
            wq_prefetch(g)
    g.stamp(f"D{L} gemm")
    gemm64_finish(g, L, "D")
    g.stamp(f"D{L} signalled")
```

```python
import sys, os
sys.path.insert(0, os.path.dirname(os.path.abspath(__file__)))
from asmlib import Emitter, v, a, s

KNAME = "interleave_layers__sliding_block__glu_gated_bilinear__prompt_kernel"

CF = 0x0000
HF = 0x8000
XID = 0xA000
ERR = 0xB000
STAMP = 0xC000
WQ = 0x100000
WO = 0x280000
WG = 0x300000
WD = 0x680000
XB = [0x900000 + n * 0x200000 for n in range(4)]
ST = [0x1100000 + n * 0x40000 for n in range(4)]
KV = [0x1200000 + n * 0x400000 for n in range(2)]
OB = [0x1A00000 + n * 0x200000 for n in range(2)]
HB = [0x1E00000 + n * 0x700000 for n in range(2)]

L_WQ = 0
L_KV = 96 * 1024
L_ONES = 144 * 1024
L_RS = L_ONES + 2048
L_RING = 0
L_RED = 112 * 1024
LDS_BYTES = 160 * 1024

S_X, S_WQKV, S_WO, S_GATE, S_UP, S_DOWN, S_OUT, S_DBG, S_WS = 4, 6, 8, 10, 12, 14, 16, 18, 20
S_I, S_J, S_W, S_MODE, S_DEAD, S_T, S_TF, S_CTF = 22, 23, 24, 25, 26, 27, 28, 29
B0, B1, B2, B3, B4 = 30, 32, 34, 36, 38
T0, T1, T2, T3, T4, T5, T6, T7 = 40, 41, 42, 43, 44, 45, 46, 47
S_R = 48
S_SPIN = 49
S_XCC = 50
S_M1, S_M2 = 52, 54

V_LANE, V_L4 = 0, 1
V_O = 2
V_RES = 10
V_RHI = 18
V_T = 20

SPIN_LIMIT = 400000


class Gen:
    def __init__(self, stop_after=None, stamps=False, force_safe=False, force_fallback=False):
        self.e = Emitter()
        self.stop_after = stop_after
        self.stamps = stamps
        self.force_safe = force_safe
        self.force_fallback = force_fallback
        self.nstamp = 0
        self.deferred = []

    def base(self, pair, ptr, const=0, terms=()):
        e = self.e
        have = False
        for (sr, mul) in terms:
            dst = T7 if have else T6
            if mul == 1:
                e(f"s_mov_b32 {s(dst)}, {s(sr)}")
            elif mul & (mul - 1) == 0:
                e(f"s_lshl_b32 {s(dst)}, {s(sr)}, {mul.bit_length() - 1}")
            else:
                e(f"s_mul_i32 {s(dst)}, {s(sr)}, {mul}")
            if have:
                e(f"s_add_u32 {s(T6)}, {s(T6)}, {s(T7)}")
            have = True
        if have and const:
            e(f"s_add_u32 {s(T6)}, {s(T6)}, {const}")
        if have:
            e(f"s_add_u32 {s(pair)}, {s(ptr)}, {s(T6)}")
        else:
            e(f"s_add_u32 {s(pair)}, {s(ptr)}, {const}")
        e(f"s_addc_u32 {s(pair + 1)}, {s(ptr + 1)}, 0")

    def bump(self, pair, const):
        e = self.e
        e(f"s_add_u32 {s(pair)}, {s(pair)}, {const}")
        e(f"s_addc_u32 {s(pair + 1)}, {s(pair + 1)}, 0")

    def frag_addr(self, n):
        return v(V_O + (n >> 2)), (n & 3) * 1024

    def load_frag(self, dst, pair, n, extra=""):
        vo, imm = self.frag_addr(n)
        return self.e(f"global_load_dwordx4 {dst}, {vo}, {s(pair, 2)} offset:{imm}{extra}")

    def store_modal(self, emit):
        e = self.e
        if self.force_safe:
            emit(" sc1")
            return
        e(f"s_cmp_eq_u32 {s(S_MODE)}, 1")
        e.either("s_cbranch_scc1", lambda: emit(""), lambda: emit(" sc1"))

    def stamp(self, name):
        if not self.stamps:
            return
        e = self.e
        n = self.nstamp
        self.nstamp += 1
        e(f"s_mov_b64 {s(S_M2, 2)}, exec")
        e.raw(f"\ts_memrealtime {s(S_M1, 2)}")
        e.raw("\ts_waitcnt lgkmcnt(0)")
        e.lg_done = e.lg_n
        e(f"s_lshl_b32 {s(T6)}, {s(S_R)}, 2")
        e(f"s_add_u32 {s(T6)}, {s(T6)}, {s(S_W)}")
        e(f"s_lshl_b32 {s(T6)}, {s(T6)}, 7")
        e(f"v_mov_b32 {v(V_T + 10)}, {s(T6)}")
        e(f"v_mov_b32 {v(V_T + 11)}, {s(S_M1)}")
        e(f"s_mov_b64 exec, 1")
        e(f"global_store_dword {v(V_T + 10)}, {v(V_T + 11)}, {s(56, 2)} offset:{n * 4}")
        e(f"s_mov_b64 exec, {s(S_M2, 2)}")
        print(f"stamp {n}: {name}", file=sys.stderr)

    def poll(self, pair, voff, expect, mask_lanes=None, imm=0):
        e = self.e
        lp, out = e.newlabel("poll"), e.newlabel("pollout")
        vt = V_T + 8
        e(f"s_mov_b32 {s(S_SPIN)}, 0")
        e(f"v_mov_b32 {v(vt + 1)}, {expect}")
        if mask_lanes is not None:
            e(f"s_mov_b64 {s(S_M2, 2)}, {mask_lanes}")
        e.loop_label(lp)
        e.raw(f"\tglobal_load_dword {v(vt)}, {voff}, {s(pair, 2)} offset:{imm} sc1")
        e.raw("\ts_waitcnt vmcnt(0)")
        e.vm_done = e.vm_n
        e.raw(f"\tv_cmp_ne_u32 vcc, {v(vt)}, {v(vt + 1)}")
        if mask_lanes is not None:
            e.raw(f"\ts_and_b64 vcc, vcc, {s(S_M2, 2)}")
        e.raw(f"\ts_cbranch_vccz {out}")
        e.raw(f"\ts_add_u32 {s(S_SPIN)}, {s(S_SPIN)}, 1")
        e.raw(f"\ts_cmp_ge_u32 {s(S_SPIN)}, {s(S_DEAD)}")
        e.raw(f"\ts_cbranch_scc0 {lp}")
        e.raw(f"\ts_mov_b32 {s(S_DEAD)}, 1")
        e.raw(f"{out}:")
        e.pos += 8
        e.hist = []

    def signal(self, phase):
        e = self.e
        e.wait_all()
        self.base(B4, S_WS, CF + phase * 4096, [(S_I, 256), (S_J, 16), (S_W, 4)])
        e(f"v_mov_b32 {v(V_T + 8)}, 1")
        e(f"v_mov_b32 {v(V_T + 9)}, 0")
        e("s_mov_b64 exec, 1")
        self.store_modal(lambda sc: e(f"global_store_dword {v(V_T + 9)}, {v(V_T + 8)}, {s(B4, 2)}{sc}"))
        e("s_mov_b64 exec, -1")

    def await_cluster(self, phase):
        self.base(B4, S_WS, CF + phase * 4096, [(S_I, 256)])
        self.poll(B4, v(V_L4), 1)

    def init(self):
        e = self.e
        e("s_cmp_ge_u32 s2, 256")
        e.branch("s_cbranch_scc1", "L_exit")
        for ptr, off in ((S_X, 0), (S_WQKV, 8), (S_WO, 16), (S_GATE, 32), (S_UP, 40), (S_DOWN, 48),
                         (S_OUT, 56), (S_DBG, 64), (S_WS, 72)):
            e(f"s_load_dwordx2 {s(ptr, 2)}, s[0:1], {off}")
        e(f"v_lshrrev_b32 {v(V_T)}, 6, v0")
        e(f"v_and_b32 {v(V_LANE)}, 63, v0")
        e(f"v_readfirstlane_b32 {s(S_W)}, {v(V_T)}")
        e(f"v_lshlrev_b32 {v(V_L4)}, 2, {v(V_LANE)}")
        e(f"v_lshlrev_b32 {v(V_O)}, 4, {v(V_LANE)}")
        for n in range(1, 8):
            e(f"v_add_u32 {v(V_O + n)}, {n * 4096}, {v(V_O)}")
        e(f"v_add_u32 {v(V_RHI)}, 57344, {v(V_O)}")
        e(f"s_and_b32 {s(T0)}, s2, 7")
        e(f"s_lshr_b32 {s(T1)}, s2, 3")
        e(f"s_and_b32 {s(S_J)}, {s(T1)}, 15")
        e(f"s_lshr_b32 {s(T1)}, {s(T1)}, 4")
        e(f"s_lshl_b32 {s(T0)}, {s(T0)}, 1")
        e(f"s_add_u32 {s(S_I)}, {s(T0)}, {s(T1)}")
        e(f"s_lshl_b32 {s(S_R)}, {s(S_I)}, 4")
        e(f"s_add_u32 {s(S_R)}, {s(S_R)}, {s(S_J)}")
        e(f"s_lshl_b32 {s(S_T)}, {s(S_I)}, 2")
        e(f"s_add_u32 {s(S_T)}, {s(S_T)}, {s(S_W)}")
        e(f"s_and_b32 {s(T0)}, {s(S_J)}, 1")
        e(f"s_lshl_b32 {s(T0)}, {s(T0)}, 1")
        e(f"s_and_b32 {s(T1)}, {s(S_W)}, 1")
        e(f"s_add_u32 {s(T0)}, {s(T0)}, {s(T1)}")
        e(f"s_lshl_b32 {s(S_TF)}, {s(S_I)}, 2")
        e(f"s_add_u32 {s(S_TF)}, {s(S_TF)}, {s(T0)}")
        e(f"s_lshr_b32 {s(T0)}, {s(S_J)}, 1")
        e(f"s_lshl_b32 {s(T0)}, {s(T0)}, 1")
        e(f"s_lshr_b32 {s(T1)}, {s(S_W)}, 1")
        e(f"s_add_u32 {s(S_CTF)}, {s(T0)}, {s(T1)}")
        e(f"s_mov_b32 {s(S_DEAD)}, {SPIN_LIMIT}")
        e(f"s_getreg_b32 {s(S_XCC)}, hwreg(HW_REG_XCC_ID, 0, 4)")
        e.wait_lg_all()
        if self.stamps:
            self.base(56, S_WS, STAMP + 0x4000)
        e(f"v_mov_b32 {v(V_T)}, 0")
        e(f"v_mov_b32 {v(V_T + 1)}, {s(S_XCC)}")
        e(f"v_lshlrev_b32 {v(V_T + 2)}, 12, {v(V_LANE)}")
        self.base(B0, S_WS, CF, [(S_I, 256), (S_J, 16), (S_W, 4)])
        e("s_mov_b64 exec, 0xff")
        e(f"global_store_dword {v(V_T + 2)}, {v(V_T)}, {s(B0, 2)} sc1")
        self.base(B1, S_WS, HF, [(S_J, 256), (S_T, 4)])
        e("s_mov_b64 exec, 3")
        e(f"global_store_dword {v(V_T + 2)}, {v(V_T)}, {s(B1, 2)} sc1")
        self.base(B2, S_WS, XID, [(S_R, 4)])
        e("s_mov_b64 exec, 1")
        e(f"global_store_dword {v(V_T)}, {v(V_T + 1)}, {s(B2, 2)} sc1")
        e("s_mov_b64 exec, -1")

    def prep(self):
        e = self.e
        VX = 32
        VB1, VB2 = 40, 44
        VA = 48
        VD = 80
        VAD = 144
        vm, vh = V_T + 2, V_T + 3
        e(f"v_and_b32 {v(vm)}, 31, {v(V_LANE)}")
        e(f"v_lshrrev_b32 {v(vh)}, 5, {v(V_LANE)}")
        e(f"v_lshlrev_b32 {v(V_T + 4)}, 10, {v(vm)}")
        e(f"v_lshl_add_u32 {v(V_T + 4)}, {v(vh)}, 4, {v(V_T + 4)}")
        self.base(B0, S_X, 0, [(S_T, 32768), (S_J, 64)])
        e(f"global_load_dwordx4 {v(VX, 4)}, {v(V_T + 4)}, {s(B0, 2)}")
        e(f"global_load_dwordx4 {v(VX + 4, 4)}, {v(V_T + 4)}, {s(B0, 2)} offset:32")
        lab_c, lab_b, lab_go, lab_done = e.newlabel("prepC"), e.newlabel("prepB"), e.newlabel("prepGo"), e.newlabel("prepDone")
        c1, c2, d = V_T + 5, V_T + 6, V_T + 7
        e(f"v_mov_b32 {v(c1)}, 0x3f80")
        e(f"v_mov_b32 {v(c2)}, 0x3f800000")
        for half, VB in ((0, VB1), (1, VB2)):
            e(f"v_lshlrev_b32 {v(d)}, 3, {v(vh)}")
            e(f"v_sub_u32 {v(d)}, {v(vm)}, {v(d)}")
            if half:
                e(f"v_subrev_u32 {v(d)}, 16, {v(d)}")
            for q in range(4):
                e(f"v_cmp_eq_u32 vcc, {2 * q}, {v(d)}")
                e(f"v_cndmask_b32 {v(VB + q)}, 0, {v(c1)}, vcc")
                e(f"v_cmp_eq_u32 vcc, {2 * q + 1}, {v(d)}")
                e(f"v_cndmask_b32 {v(V_T + 8)}, 0, {v(c2)}, vcc")
                e(f"v_or_b32 {v(VB + q)}, {v(VB + q)}, {v(V_T + 8)}")
        e(f"s_cmp_ge_u32 {s(S_R)}, 160")
        e.branch("s_cbranch_scc1", lab_c)
        st_branch = e.save_cnt()
        e(f"s_cmp_ge_u32 {s(S_R)}, 48")
        e.branch("s_cbranch_scc1", lab_b)
        e(f"s_mov_b32 {s(T0)}, 3072")
        e(f"s_mov_b32 {s(T1)}, 3072")
        self.base(B0, S_WQKV, 0, [(S_R, 64)])
        self.base(B1, S_WQKV, 32, [(S_R, 64)])
        e(f"s_lshr_b32 {s(T2)}, {s(S_R)}, 4")
        e(f"s_add_u32 {s(T2)}, {s(T2)}, 2")
        e(f"s_cmp_ge_u32 {s(T2)}, 3")
        e(f"s_cselect_b32 {s(T3)}, 3, 0")
        e(f"s_sub_u32 {s(T2)}, {s(T2)}, {s(T3)}")
        e(f"s_and_b32 {s(T3)}, {s(S_R)}, 15")
        self.base(B2, S_WS, WQ, [(T3, 98304), (T2, 1024), (S_W, 8 * 3072)])
        e.branch("s_branch", lab_go)
        e.hist = []
        e.label(lab_b)
        e(f"s_sub_u32 {s(T2)}, {s(S_R)}, 48")
        e(f"s_mov_b32 {s(T0)}, 3584")
        e(f"s_mov_b32 {s(T1)}, 7168")
        self.base(B0, S_GATE, 0, [(T2, 32)])
        self.base(B1, S_UP, 0, [(T2, 32)])
        e(f"s_mul_i32 {s(T3)}, {s(T2)}, 9363")
        e(f"s_lshr_b32 {s(T3)}, {s(T3)}, 16")
        e(f"s_mul_i32 {s(T4)}, {s(T3)}, 7")
        e(f"s_sub_u32 {s(T4)}, {s(T2)}, {s(T4)}")
        self.base(B2, S_WS, WG, [(T3, 229376), (T4, 1024), (S_W, 8 * 7168)])
        e.label(lab_go)
        e(f"s_lshl_b32 {s(T2)}, {s(S_W)}, 7")
        e(f"v_add_u32 {v(VAD)}, {s(T2)}, {v(vm)}")
        e(f"v_mul_lo_u32 {v(VAD)}, {v(VAD)}, {s(T0)}")
        e(f"v_lshl_add_u32 {v(VAD)}, {v(vh)}, 4, {v(VAD)}")
        e(f"s_lshl_b32 {s(T2)}, {s(T0)}, 5")
        for n in range(1, 4):
            e(f"v_add_u32 {v(VAD + n)}, {s(T2)}, {v(VAD + n - 1)}")
        for n in range(4):
            e(f"global_load_dwordx4 {v(VA + 8 * n, 4)}, {v(VAD + n)}, {s(B0, 2)}")
            e(f"global_load_dwordx4 {v(VA + 8 * n + 4, 4)}, {v(VAD + n)}, {s(B1, 2)}")
        for n in range(4):
            e(f"v_mfma_f32_32x32x16_bf16 {v(VD + 16 * n, 16)}, {v(VA + 8 * n, 4)}, {v(VB1, 4)}, 0")
            e(f"v_mfma_f32_32x32x16_bf16 {v(VD + 16 * n, 16)}, {v(VA + 8 * n + 4, 4)}, {v(VB2, 4)}, {v(VD + 16 * n, 16)}")
        acc = 148
        e(f"v_pk_add_f32 {v(acc, 2)}, {v(VD, 2)}, {v(VD + 2, 2)}")
        e(f"v_pk_add_f32 {v(acc + 2, 2)}, {v(VD + 4, 2)}, {v(VD + 6, 2)}")
        for r in range(8, 64, 4):
            e(f"v_pk_add_f32 {v(acc, 2)}, {v(acc, 2)}, {v(VD + r, 2)}")
            e(f"v_pk_add_f32 {v(acc + 2, 2)}, {v(acc + 2, 2)}, {v(VD + r + 2, 2)}")
        e(f"v_pk_add_f32 {v(acc, 2)}, {v(acc, 2)}, {v(acc + 2, 2)}")
        e(f"v_add_f32 {v(acc)}, {v(acc)}, {v(acc + 1)}")
        e(f"s_lshl_b32 {s(T2)}, {s(S_W)}, 8")
        e(f"s_add_u32 {s(T2)}, {s(T2)}, {L_RS}")
        e(f"v_add_u32 {v(acc + 2)}, {s(T2)}, {v(V_L4)}")
        e(f"ds_write_b32 {v(acc + 2)}, {v(acc)}")
        e.wait_lg_all()
        e("s_barrier")
        e(f"v_lshlrev_b32 {v(acc + 2)}, 2, {v(vm)}")
        e(f"v_add_u32 {v(acc + 2)}, {L_RS}, {v(acc + 2)}")
        for q in range(8):
            e(f"ds_read_b32 {v(acc + 4 + q)}, {v(acc + 2)} offset:{q * 128}")
        for q in range(1, 8):
            e(f"v_add_f32 {v(acc + 4)}, {v(acc + 4)}, {v(acc + 4 + q)}")
        e(f"v_mul_f32 {v(acc + 4)}, 0xbb000000, {v(acc + 4)}")
        for r in range(0, 64, 2):
            e(f"v_pk_add_f32 {v(VD + r, 2)}, {v(VD + r, 2)}, {v(acc + 4, 2)} op_sel_hi:[1,0]")
        for n in range(4):
            for r in range(8):
                e(f"v_cvt_pk_bf16_f32 {v(VA + 8 * n + r)}, {v(VD + 16 * n + 2 * r)}, {v(VD + 16 * n + 2 * r + 1)}")
        for n in range(4):
            for sp in range(2):
                e(f"global_store_dwordx4 {v(V_O)}, {v(VA + 8 * n + 4 * sp, 4)}, {s(B2, 2)} sc1")
                if not (n == 3 and sp == 1):
                    e(f"s_add_u32 {s(B2)}, {s(B2)}, {s(T1)}")
                    e(f"s_addc_u32 {s(B2 + 1)}, {s(B2 + 1)}, 0")
        e.branch("s_branch", lab_done)
        e.hist = []
        e.restore_cnt(st_branch)
        e.label(lab_c)
        e(f"v_lshlrev_b32 {v(VAD)}, 10, {v(vm)}")
        e(f"v_lshl_add_u32 {v(VAD)}, {v(vh)}, 4, {v(VAD)}")
        e(f"s_sub_u32 {s(T0)}, {s(S_R)}, 160")
        e(f"s_mul_i32 {s(T0)}, {s(T0)}, 12")
        e(f"s_mul_i32 {s(T1)}, {s(S_W)}, 3")
        e(f"s_add_u32 {s(T0)}, {s(T0)}, {s(T1)}")
        srcp = [B0, B1, B2]
        dstp = [58, 60, 62]
        for n in range(3):
            lo, lj = e.newlabel("pcwo"), e.newlabel("pcj")
            e(f"s_add_u32 {s(T1)}, {s(T0)}, {n}")
            e(f"s_cmp_lt_u32 {s(T1)}, 256")
            e.branch("s_cbranch_scc1", lo)
            e(f"s_sub_u32 {s(T1)}, {s(T1)}, 256")
            e(f"s_mul_i32 {s(T2)}, {s(T1)}, 1171")
            e(f"s_lshr_b32 {s(T2)}, {s(T2)}, 16")
            e(f"s_mul_i32 {s(T3)}, {s(T2)}, 56")
            e(f"s_sub_u32 {s(T3)}, {s(T1)}, {s(T3)}")
            self.base(srcp[n], S_DOWN, 0, [(T2, 64), (T3, 32768)])
            self.base(dstp[n], S_WS, WD, [(T2, 114688), (T3, 2048)])
            e.branch("s_branch", lj)
            e.label(lo)
            e(f"s_lshr_b32 {s(T2)}, {s(T1)}, 4")
            e(f"s_and_b32 {s(T3)}, {s(T1)}, 15")
            self.base(srcp[n], S_WO, 0, [(T2, 64), (T3, 32768)])
            self.base(dstp[n], S_WS, WO, [(T2, 32768), (T3, 2048)])
            e.label(lj)
            e(f"global_load_dwordx4 {v(VA + 8 * n, 4)}, {v(VAD)}, {s(srcp[n], 2)}")
            e(f"global_load_dwordx4 {v(VA + 8 * n + 4, 4)}, {v(VAD)}, {s(srcp[n], 2)} offset:32")
        for n in range(3):
            e(f"v_mfma_f32_32x32x16_bf16 {v(VD + 16 * n, 16)}, {v(VA + 8 * n, 4)}, {v(VB1, 4)}, 0")
            e(f"v_mfma_f32_32x32x16_bf16 {v(VD + 16 * n, 16)}, {v(VA + 8 * n + 4, 4)}, {v(VB2, 4)}, {v(VD + 16 * n, 16)}")
        for n in range(3):
            for r in range(8):
                e(f"v_cvt_pk_bf16_f32 {v(VA + 8 * n + r)}, {v(VD + 16 * n + 2 * r)}, {v(VD + 16 * n + 2 * r + 1)}")
        for n in range(3):
            for sp in range(2):
                e(f"global_store_dwordx4 {v(V_O)}, {v(VA + 8 * n + 4 * sp, 4)}, {s(dstp[n], 2)} offset:{sp * 1024} sc1")
        e.label(lab_done)
        e.flush_haz()
        e.wait_vm_all()
        e.pend = {}
        lo, hi, sm, sq = V_T + 4, V_T + 5, V_T + 6, V_T + 7
        for r in range(8):
            e(f"v_lshlrev_b32 {v(lo)}, 16, {v(VX + r)}")
            e(f"v_and_b32 {v(hi)}, 0xffff0000, {v(VX + r)}")
            if r == 0:
                e(f"v_add_f32 {v(sm)}, {v(lo)}, {v(hi)}")
                e(f"v_mul_f32 {v(sq)}, {v(lo)}, {v(lo)}")
            else:
                e(f"v_add_f32 {v(sm)}, {v(sm)}, {v(lo)}")
                e(f"v_fmac_f32 {v(sq)}, {v(lo)}, {v(lo)}")
                e(f"v_add_f32 {v(sm)}, {v(sm)}, {v(hi)}")
            e(f"v_fmac_f32 {v(sq)}, {v(hi)}, {v(hi)}")
        e(f"v_permlane32_swap_b32 {v(sm)}, {v(sq)}")
        for sp in range(2):
            e(f"v_permlane32_swap_b32 {v(VX + 4 * sp)}, {v(VX + 4 * sp + 2)}")
            e(f"v_permlane32_swap_b32 {v(VX + 4 * sp + 1)}, {v(VX + 4 * sp + 3)}")
        e(f"v_add_f32 {v(sm)}, {v(sm)}, {v(sq)}")
        self.base(B0, S_WS, XB[0], [(S_T, 32768), (S_J, 2048)])
        self.base(B1, S_WS, ST[0], [(S_T, 4096), (S_J, 256)])
        e(f"global_store_dwordx4 {v(V_O)}, {v(VX, 4)}, {s(B0, 2)} sc1")
        e(f"global_store_dwordx4 {v(V_O)}, {v(VX + 4, 4)}, {s(B0, 2)} offset:1024 sc1")
        e(f"global_store_dword {v(V_L4)}, {v(sm)}, {s(B1, 2)} sc1")

    def g0(self):
        e = self.e
        e.wait_all()
        e("s_barrier")
        skip = e.newlabel("g0skip")
        e(f"s_cmp_lg_u32 {s(S_W)}, 0")
        e.branch("s_cbranch_scc1", skip)
        e(f"v_mov_b32 {v(V_T)}, 1")
        e(f"v_mov_b32 {v(V_T + 1)}, {s(S_R)}")
        e("s_mov_b64 exec, 1")
        e(f"global_store_byte {v(V_T + 1)}, {v(V_T)}, {s(S_DBG, 2)} sc1")
        e("s_mov_b64 exec, -1")
        self.poll(S_DBG, v(V_L4), "0x01010101")
        e.label(skip)
        e.wait_all()
        e("s_barrier")
        self.base(B0, S_WS, XID, [(S_I, 64)])
        e(f"v_and_b32 {v(V_T)}, 15, {v(V_LANE)}")
        e(f"v_lshlrev_b32 {v(V_T)}, 2, {v(V_T)}")
        e(f"global_load_dword {v(V_T + 1)}, {v(V_T)}, {s(B0, 2)} sc1")
        e(f"v_cmp_ne_u32 vcc, {s(S_XCC)}, {v(V_T + 1)}")
        e("s_cmp_eq_u64 vcc, 0")
        e(f"s_cselect_b32 {s(S_MODE)}, 1, 0")

    def finish(self):
        e = self.e
        e.label("L_exit")
        e.raw("\ts_endpgm")
        for f in self.deferred:
            f()

    def build(self):
        from phases import phaseQ, phaseO, phaseG, phaseD
        g = self
        g.init()
        g.stamp("start")
        g.prep()
        g.stamp("prep done")
        g.g0()
        g.stamp("g0 done")
        seq = []
        for L in range(2):
            seq += [("Q", L), ("O", L), ("G", L), ("D", L)]
        for n, (ph, L) in enumerate(seq):
            if self.stop_after is not None and n >= self.stop_after:
                break
            {"Q": phaseQ, "O": phaseO, "G": phaseG, "D": phaseD}[ph](g, L)
        g.e.wait_all()
        g.finish()
        return self.wrap(g.e.text())

    def wrap(self, body):
        hdr = f"""; Fused 2 x (sliding-window attention block + bilinear GLU block), one persistent launch.
; @launch grid=(256,1,1) block=(256,1,1) lds={LDS_BYTES}
.amdgcn_target "amdgcn-amd-amdhsa--gfx950"
.text
.globl {KNAME}
.p2align 8
.type {KNAME},@function
{KNAME}:
"""
        tail = f""".section .rodata,"a"
.p2align 6
.amdhsa_kernel {KNAME}
  .amdhsa_next_free_vgpr 512
  .amdhsa_next_free_sgpr 102
  .amdhsa_accum_offset 256
  .amdhsa_group_segment_fixed_size 0
  .amdhsa_kernarg_size 80
  .amdhsa_user_sgpr_count 2
  .amdhsa_user_sgpr_kernarg_segment_ptr 1
  .amdhsa_system_sgpr_workgroup_id_x 1
.end_amdhsa_kernel
"""
        return hdr + body + tail


if __name__ == "__main__":
    import argparse
    ap = argparse.ArgumentParser()
    ap.add_argument("-o", default="interleave_layers__sliding_block__glu_gated_bilinear__prompt.s")
    ap.add_argument("--stop", type=int, default=None)
    ap.add_argument("--stamps", action="store_true")
    ap.add_argument("--safe", action="store_true")
    ap.add_argument("--fallback", action="store_true")
    args = ap.parse_args()
    g = Gen(args.stop, args.stamps, args.safe, args.fallback)
    txt = g.build()
    open(args.o, "w").write(txt)
    print(f"wrote {args.o}: {len(txt)} bytes, {g.e.ninstr} instrs, {g.e.nops} nops", file=sys.stderr)
```

```python
from asmlib import v, a, s
from gen import *

MF = "v_mfma_f32_32x32x16_bf16"
S_BG = 64
S_RW = 66
S_WQW = 67
S_BQ = 58
NEG = "0xf149f2ca"


def lds_addr(off):
    if off < 57344:
        return v(V_O), off
    if off < 114688:
        return v(V_RHI), off - 57344
    return v(V_RH2), off - 114688


def wq_ops(g):
    e = g.e

    def piece(p):
        def f():
            if p == 0:
                g.base(S_BQ, S_WS, WQ, [(S_J, 98304), (S_W, 24576)])
                e(f"s_mul_i32 {s(S_WQW)}, {s(S_W)}, 24576")
            if p % 4 == 0:
                e(f"s_add_u32 m0, {s(S_WQW)}, {L_WQ + (p >> 2) * 4096}")
            vo, imm = g.frag_addr(p)
            g.wq_tok = e(f"global_load_lds_dwordx4 {vo}, {s(S_BQ, 2)} offset:{imm}")
        return f
    return [piece(p) for p in range(24)]


def ring_setup(g):
    e = g.e
    g.base(S_BG, S_WS, WG, [(S_J, 229376), (S_W, 7168)])
    e(f"s_mul_i32 {s(S_RW)}, {s(S_W)}, 7168")


def ring_dma_ops(g, c):
    e = g.e
    ops = []

    def piece(p):
        def f():
            if p % 4 == 0:
                e(f"s_add_u32 m0, {s(S_RW)}, {L_RING + (c % 5) * 28672 + (p >> 2) * 4096}")
            vo, imm = g.frag_addr(p)
            tok = e(f"global_load_lds_dwordx4 {vo}, {s(S_BG, 2)} offset:{imm}")
            if p == 6:
                g.ring_tok[c] = tok
                g.bump(S_BG, 28672)
        return f
    return [piece(p) for p in range(7)]


def load_stats(g, nb, vdst):
    e = g.e
    g.cbase(B1, C_ST[nb], [(S_W, 4096)])
    for f in range(16):
        e(f"global_load_dword {v(vdst + f)}, {v(V_L4)}, {s(B1, 2)} offset:{f * 256}")


def stats_ops(g, vsrc, vr, vm):
    e = g.e
    I = []
    for st in (8, 4, 2):
        for f in range(0, st, 2):
            I.append(f"v_pk_add_f32 {v(vsrc + f, 2)}, {v(vsrc + f, 2)}, {v(vsrc + f + st, 2)}")
    I.append(f"v_add_f32 {v(vsrc)}, {v(vsrc)}, {v(vsrc + 1)}")
    I.append(f"v_mov_b32 {v(vsrc + 1)}, {v(vsrc)}")
    I.append(f"v_permlane32_swap_b32 {v(vsrc)}, {v(vsrc + 1)}")
    I.append(f"v_mul_f32 {v(vsrc)}, 0xbb000000, {v(vsrc)}")
    I.append(f"v_mul_f32 {v(vsrc + 1)}, 0x3b000000, {v(vsrc + 1)}")
    I.append(f"v_cvt_pk_bf16_f32 {v(vsrc + 2)}, {v(vsrc)}, {v(vsrc)}")
    I.append(f"v_fma_f32 {v(vsrc + 1)}, -{v(vsrc)}, {v(vsrc)}, {v(vsrc + 1)}")
    I.append(f"v_lshlrev_b32 {v(vsrc + 2)}, 16, {v(vsrc + 2)}")
    I.append(f"v_max_f32 {v(vsrc + 1)}, 0, {v(vsrc + 1)}")
    I.append(f"v_sub_f32 {v(vsrc + 2)}, {v(vsrc)}, {v(vsrc + 2)}")
    I.append(f"v_add_f32 {v(vsrc + 1)}, 0x3727c5ac, {v(vsrc + 1)}")
    I.append(f"v_cvt_pk_bf16_f32 {v(vm)}, {v(vsrc)}, {v(vsrc + 2)}")
    I.append(f"v_rsq_f32 {v(vr)}, {v(vsrc + 1)}")
    for q in range(1, 4):
        I.append(f"v_mov_b32 {v(vm + q)}, {v(vm)}")
    return [(lambda t=t: e(t)) for t in I]


def take(lst, n):
    for _ in range(n):
        if lst:
            lst.pop(0)()


def phaseQ(g, L):
    e = g.e
    AK, AV, AQ = 32, 48, 64
    WB = 80
    VKA, VNEG = 104, 105
    VST = 112
    VR, VRQ = 128, 130
    VRT = 132
    KF, VF, QF = 148, 156, 164
    SB = [32, 48]
    PB = [64, 72]
    OA = [176, 192]
    KB = [80, 84]
    VB = [88, 96]
    CD, CZ, CO = 208, 224, 240
    VVA = [172, 173]
    VVS = [174, 175]
    CSK, CSV, CSQ, VM = 176, 180, 184, 188
    nb = 0 if L == 0 else 2
    LA = 8

    def csloads():
        g.base(B2, S_WS, WCSQ, [(S_J, 3072)])
        for q in range(3):
            e(f"global_load_dwordx4 {v(CSK + 4 * q, 4)}, {v(V_O)}, {s(B2, 2)} offset:{q * 1024}")

    def xloads(n):
        load_stats(g, nb, VST)
        for k in range(n):
            g.load_frag(a(4 * k, 4), B0, k)
    g.cbase(B0, C_X[nb], [(S_W, 32768)])
    if L == 0:
        g.stamp(f"Q{L} sync")
        xloads(32)
        g.cbase(B2, C_X[0], [(S_TL, 32768), (S_CTF, 2048)])
        e(f"global_load_dwordx4 {v(V_RES, 4)}, {v(V_O)}, {s(B2, 2)}")
        e(f"global_load_dwordx4 {v(V_RES + 4, 4)}, {v(V_O)}, {s(B2, 2)} offset:1024")
    else:
        csloads()
    tn, th, tu = V_T, V_T + 1, V_T + 2
    e(f"v_and_b32 {v(tn)}, 31, {v(V_LANE)}")
    e(f"v_lshrrev_b32 {v(th)}, 5, {v(V_LANE)}")
    e(f"v_mov_b32 {v(VNEG)}, {NEG}")
    e(f"v_lshlrev_b32 {v(tu)}, 2, {v(th)}")
    e(f"v_sub_u32 {v(tu)}, {v(tn)}, {v(tu)}")
    for r in range(16):
        kk = 8 * (r >> 2) + (r & 3)
        e(f"v_cmp_gt_i32 vcc, {kk}, {v(tu)}")
        e(f"v_cndmask_b32 {v(CD + r)}, 0, {v(VNEG)}, vcc")
        e(f"v_mov_b32 {v(CZ + r)}, 0")
        e(f"v_sub_f32 {v(CO + r)}, {v(VNEG)}, {v(CD + r)}")
    lab = e.newlabel("oldok")
    e(f"s_cmp_ge_u32 {s(S_T)}, 8")
    e.branch("s_cbranch_scc1", lab)
    for r in range(16):
        e(f"v_mov_b32 {v(CO + r)}, {v(VNEG)}")
    e.label(lab)
    ones = V_T + 4
    for r in range(4):
        e(f"v_mov_b32 {v(ones + r)}, 0x3f803f80")
    e(f"v_add_u32 {v(V_T + 3)}, {L_ONES}, {v(V_O)}")

    def write_ones():
        e(f"ds_write_b128 {v(V_T + 3)}, {v(ones, 4)}")
        e(f"ds_write_b128 {v(V_T + 3)}, {v(ones, 4)} offset:1024")
    if L == 0:
        write_ones()
    e(f"s_lshl_b32 {s(T0)}, {s(S_W)}, 12")
    e(f"s_add_u32 {s(T0)}, {s(T0)}, {L_KV}")
    e(f"v_add_u32 {v(VKA)}, {s(T0)}, {v(V_O)}")
    t0, t1, t2 = V_T + 10, V_T + 8, V_T + 9
    e(f"v_and_b32 {v(t0)}, 15, {v(tn)}")
    e(f"v_subrev_u32 {v(t0)}, 4, {v(t0)}")
    e(f"v_cmp_gt_u32 vcc, 8, {v(t0)}")
    e(f"v_mov_b32 {v(t1)}, 64")
    e(f"v_cndmask_b32 {v(t1)}, 0, {v(t1)}, vcc")
    e(f"v_add_u32 {v(t1)}, {L_ONES}, {v(t1)}")
    e(f"v_add_u32 {v(t2)}, {8 * 4096 + 2048}, {v(VKA)}")
    e(f"v_mov_b32 {v(t0)}, 4096")
    e(f"v_cmp_gt_u32 vcc, 16, {v(tn)}")
    e(f"v_cndmask_b32 {v(VVA[0])}, {v(t1)}, {v(t2)}, vcc")
    e(f"v_cndmask_b32 {v(VVA[1])}, {v(t2)}, {v(t1)}, vcc")
    e(f"v_cndmask_b32 {v(VVS[0])}, 0, {v(t0)}, vcc")
    e(f"v_sub_u32 {v(VVS[1])}, {v(t0)}, {v(VVS[0])}")
    ring_setup(g)
    if L == 0:
        g.await_jobs()
        g.stamp("Q0 jobs done")
        for op in wq_ops(g):
            op()
        csloads()
        e.wait_vm(g.wq_tok)
        e("s_barrier")
        xl = []
    else:
        g.await_cluster(3)
        g.stamp(f"Q{L} sync")
        xloads(LA)
        write_ones()
        xl = [(lambda k=k: g.load_frag(a(4 * k, 4), B0, k)) for k in range(LA, 32)]
    g.stamp(f"Q{L} W ready")

    def rdw(k, slot, dst):
        va, imm = lds_addr(L_WQ + k * 3072 + slot * 1024)
        e(f"ds_read_b128 {v(dst, 4)}, {va} offset:{imm}")
    for k in range(2):
        rdw(k, 0, WB + 8 * k)
        rdw(k, 1, WB + 8 * k + 4)
    side = stats_ops(g, VST, VR, VM)
    side.append(lambda: e(f"v_mul_f32 {v(VRQ)}, 0x3eb8aa3b, {v(VR)}"))
    side.append(lambda: (e(f"s_lshl_b32 {s(T0)}, {s(S_W)}, 8"), e(f"s_add_u32 {s(T0)}, {s(T0)}, {L_RS}")))
    side.append(lambda: e(f"v_add_u32 {v(V_T + 3)}, {s(T0)}, {v(V_L4)}"))
    side.append(lambda: e(f"v_lshlrev_b32 {v(V_T + 4)}, 4, {v(th)}"))
    side.append(lambda: e(f"ds_write_b32 {v(V_T + 3)}, {v(VR)}"))
    side.append(lambda: e(f"v_add_u32 {v(V_T + 4)}, {s(T0)}, {v(V_T + 4)}"))
    for q in range(4):
        side.append(lambda q=q: e(f"ds_read_b128 {v(VRT + 4 * q, 4)}, {v(V_T + 4)} offset:{q * 32}"))
    wo = [(lambda b=b, k=k: g.load_frag(a(128 + (b * 8 + k) * 4, 4), S_WOB[b], k)) for k in range(8) for b in range(2)]
    for k in range(32):
        b, nbuf = WB + 8 * (k % 3), WB + 8 * ((k + 2) % 3)
        if k + 2 < 32:
            rdw(k + 2, 0, nbuf)
        e(f"{MF} {v(AK, 16)}, {v(b, 4)}, {a(4 * k, 4)}, {v(AK, 16) if k else 0}")
        take(xl, 1)
        if k >= 4:
            take(side, 1)
        if k + 2 < 32:
            rdw(k + 2, 1, nbuf + 4)
        e(f"{MF} {v(AV, 16)}, {a(4 * k, 4)}, {v(b + 4, 4)}, {v(AV, 16) if k else 0}")
        if k >= 4:
            take(side, 1)
    take(side, 99)
    e(f"{MF} {v(AK, 16)}, {v(CSK, 4)}, {v(VM, 4)}, {v(AK, 16)}")
    e(f"{MF} {v(AV, 16)}, {v(VM, 4)}, {v(CSV, 4)}, {v(AV, 16)}")
    g.stamp(f"Q{L} kv gemm")
    for k in range(3):
        rdw(k, 2, WB + 4 * k)
    for r in range(0, 16, 2):
        e(f"v_pk_mul_f32 {v(AK + r, 2)}, {v(AK + r, 2)}, {v(VR, 2)} op_sel_hi:[1,0]")
    for r in range(8):
        e(f"v_cvt_pk_bf16_f32 {v(KF + r)}, {v(AK + 2 * r)}, {v(AK + 2 * r + 1)}")
    e(f"v_add_u32 {v(V_T + 3)}, {8 * 4096}, {v(VKA)}")
    g.cbase(B2, C_KV[L], [(S_W, 65536), (S_J, 4096)])
    for q in range(2):
        e(f"global_store_dwordx4 {v(V_O)}, {v(KF + 4 * q, 4)}, {s(B2, 2)} offset:{q * 1024} sc1")
        e(f"ds_write_b128 {v(V_T + 3)}, {v(KF + 4 * q, 4)} offset:{q * 1024}")
    for r in range(0, 16, 2):
        e(f"v_pk_mul_f32 {v(AV + r, 2)}, {v(AV + r, 2)}, {v(VRT + r, 2)}")
    for r in range(8):
        e(f"v_cvt_pk_bf16_f32 {v(VF + r)}, {v(AV + 2 * r)}, {v(AV + 2 * r + 1)}")
    kvtok = None
    for q in range(2):
        kvtok = e(f"global_store_dwordx4 {v(V_O)}, {v(VF + 4 * q, 4)}, {s(B2, 2)} offset:{2048 + q * 1024} sc1")
        e(f"ds_write_b128 {v(V_T + 3)}, {v(VF + 4 * q, 4)} offset:{2048 + q * 1024}")
    g.stamp(f"Q{L} kv stored")
    g.base(B4, S_WS, HF + L * 4096, [(S_J, 256), (S_T, 4)])
    for k in range(32):
        if k + 3 < 32:
            rdw(k + 3, 2, WB + 4 * ((k + 3) & 3))
        e(f"{MF} {v(AQ, 16)}, {v(WB + 4 * (k & 3), 4)}, {a(4 * k, 4)}, {v(AQ, 16) if k else 0}")
        take(wo, 1)
        if k == 26:
            e.wait_vm(kvtok)
            g.flag_store(B4, " sc1")
    for q in range(2):
        e(f"s_lshl_b32 {s(T0)}, {s(S_W)}, 1")
        e(f"s_add_u32 {s(T0)}, {s(T0)}, {q}")
        e(f"s_lshl_b32 {s(T1)}, {s(S_I)}, 2")
        e(f"s_add_u32 {s(T2)}, {s(T1)}, {s(T0)}")
        e(f"s_sub_u32 {s(T2)}, {s(T2)}, 8")
        e(f"s_and_b32 {s(T0)}, {s(T0)}, 3")
        e(f"s_add_u32 {s(T1)}, {s(T1)}, {s(T0)}")
        e(f"s_cmp_lt_i32 {s(T2)}, 0")
        e(f"s_cselect_b32 {s(T4 + q)}, {s(T1)}, {s(T2)}")
    e(f"{MF} {v(AQ, 16)}, {v(CSQ, 4)}, {v(VM, 4)}, {v(AQ, 16)}")
    for r in range(0, 16, 2):
        e(f"v_pk_mul_f32 {v(AQ + r, 2)}, {v(AQ + r, 2)}, {v(VRQ, 2)} op_sel_hi:[1,0]")
    for r in range(8):
        e(f"v_cvt_pk_bf16_f32 {v(QF + r)}, {v(AQ + 2 * r)}, {v(AQ + 2 * r + 1)}")
    g.stamp(f"Q{L} q done")
    e(f"s_lshl_b32 {s(T0)}, {s(T5)}, 2")
    e(f"s_lshl_b32 {s(T1)}, {s(T4)}, 2")
    e(f"v_mov_b32 {v(V_T + 3)}, {s(T0)}")
    e("s_mov_b64 exec, 1")
    e(f"v_mov_b32 {v(V_T + 3)}, {s(T1)}")
    e("s_mov_b64 exec, -1")
    g.base(B4, S_WS, HF + L * 4096, [(S_J, 256)])
    g.poll(B4, v(V_T + 3))
    g.stamp(f"Q{L} halo flags")
    e(f"s_lshl_b32 {s(T0)}, {s(S_W)}, 13")
    htok = None
    for q in range(2):
        e(f"s_lshr_b32 {s(T1)}, {s(T4 + q)}, 2")
        e(f"s_and_b32 {s(T2)}, {s(T4 + q)}, 3")
        g.base(B2, S_WS, CL0 + C_KV[L], [(T1, CLS), (T2, 65536), (S_J, 4096)])
        e(f"s_add_u32 m0, {s(T0)}, {L_KV + q * 4096}")
        for p in range(4):
            htok = e(f"global_load_lds_dwordx4 {v(V_O)}, {s(B2, 2)} offset:{p * 1024}")
    e.wait_vm(htok)
    e.wait_lg_all()
    e("s_barrier")
    g.stamp(f"Q{L} halo landed")
    g.ring_tok = {}
    r_ = [op for c in range(3) for op in ring_dma_ops(g, c)]
    w_ = [(lambda b=b, k=k: g.load_frag(a(8 * k + 4 * b, 4), S_WD[b], k)) for k in range(16) for b in range(2)]
    ring = []
    while r_ or w_:
        for src in (r_, w_, r_, w_, w_):
            if src:
                ring.append(src.pop(0))

    def cblk(d):
        return CD if d == 0 else (CO if d == 8 else CZ)

    def rdk(n):
        d, h = n >> 1, n & 1
        e(f"ds_read_b128 {v(KB[n & 1], 4)}, {v(VKA)} offset:{(8 - d) * 4096 + h * 1024}")

    def smf(n):
        d, h = n >> 1, n & 1
        if h == 0 and 1 <= d <= 7:
            lab = e.newlabel("czok")
            e(f"s_cmp_lg_u32 {s(S_T)}, {d - 1}")
            e.branch("s_cbranch_scc1", lab)
            for r in range(16):
                e(f"v_mov_b32 {v(CZ + r)}, {v(VNEG)}")
            e.label(lab)
        e(f"{MF} {v(SB[n & 1], 16)}, {v(KB[n & 1], 4)}, {v(QF + 4 * h, 4)}, {v(cblk(d), 16)}")

    def pv(n, sp):
        h = n & 1
        first = (n < 2 and sp == 0)
        e(f"{MF} {v(OA[h], 16)}, {v(VB[n & 1] + 4 * sp, 4)}, {v(PB[n & 1] + 4 * sp, 4)}, {0 if first else v(OA[h], 16)}")

    rdk(0)
    rdk(1)
    smf(0)
    for n in range(18):
        S = SB[n & 1]
        h = n & 1
        if n + 1 < 18:
            smf(n + 1)
        for r in range(16):
            e(f"v_exp_f32 {v(S + r)}, {v(S + r)}")
            if r == 3:
                if n >= 1:
                    pv(n - 1, 0)
                if n + 2 < 18:
                    rdk(n + 2)
            if r == 9:
                for sp in range(2):
                    e(f"ds_read_b128 {v(VB[n & 1] + 4 * sp, 4)}, {v(VVA[h])} offset:{sp * 1024}")
                if n >= 1:
                    pv(n - 1, 1)
            if r == 12 and n < 16:
                e(f"v_sub_u32 {v(VVA[h])}, {v(VVA[h])}, {v(VVS[h])}")
            if r in (1, 5, 11, 14):
                take(ring, 1)
        for r in range(8):
            e(f"v_cvt_pk_bf16_f32 {v(PB[n & 1] + r)}, {v(S + 2 * r)}, {v(S + 2 * r + 1)}")
    pv(17, 0)
    pv(17, 1)
    assert not ring
    g.stamp(f"Q{L} attn")
    LR = [OA[0] + 8, OA[1]]
    fb, norm = f"L_fallback_{L}", f"L_norm_{L}"
    e(f"v_min_f32 {v(V_T + 3)}, {v(LR[0])}, {v(LR[1])}")
    e(f"v_max_f32 {v(V_T + 4)}, {v(LR[0])}, {v(LR[1])}")
    e(f"v_cmp_o_f32 vcc, {v(LR[0])}, {v(LR[1])}")
    e(f"s_mov_b64 {s(S_M1, 2)}, vcc")
    e(f"v_cmp_le_f32 vcc, 0x21800000, {v(V_T + 3)}")
    e(f"s_and_b64 {s(S_M1, 2)}, {s(S_M1, 2)}, vcc")
    e(f"v_cmp_ge_f32 vcc, 0x5d800000, {v(V_T + 4)}")
    e(f"s_and_b64 {s(S_M1, 2)}, {s(S_M1, 2)}, vcc")
    e(f"s_cmp_eq_u64 {s(S_M1, 2)}, exec")
    if g.force_fallback:
        e.branch("s_branch", fb)
    else:
        e.branch("s_cbranch_scc0", fb)
    e.flush_haz()
    e.raw(f"{norm}:")
    e.snaps.pop(fb, None)
    VRL = V_T + 4
    g.cbase(B2, C_OB[L], [(S_W, 32768), (S_J, 2048)])
    OF = KF
    for h in range(2):
        ob = OA[h] + 8 * h
        e(f"v_rcp_f32 {v(VRL)}, {v(LR[h])}")
        for r in range(0, 8, 2):
            e(f"v_pk_mul_f32 {v(ob + r, 2)}, {v(ob + r, 2)}, {v(VRL, 2)} op_sel_hi:[1,0]")
        for r in range(4):
            e(f"v_cvt_pk_bf16_f32 {v(OF + 4 * h + r)}, {v(ob + 2 * r)}, {v(ob + 2 * r + 1)}")

    def st(sc):
        for h in range(2):
            e(f"global_store_dwordx4 {v(V_O)}, {v(OF + 4 * h, 4)}, {s(B2, 2)} offset:{h * 1024}{sc}")
    g.store_data(st)
    g.signal(4 * L + 0)
    g.stamp(f"Q{L} signalled")
    g.deferred.append(lambda: fallback(g, L, fb, norm, QF, OA, CD, CO, VKA, VVA, VVS, VNEG, SB, PB, KB, VB))


def fallback(g, L, fb, norm, QF, OA, CD, CO, VKA, VVA, VVS, VNEG, SB, PB, KB, VB):
    e = g.e
    e.hist = []
    e.pend = {}
    e.raw(f"{fb}:")
    e.flush_haz()
    e.nop(12)
    e.wait_lg_all()
    S, P, K, V = SB[0], PB[0], KB[0], VB[0]
    VM, VA2, VV2 = SB[1], SB[1] + 2, SB[1] + 3
    e(f"s_min_u32 {s(T0)}, {s(S_T)}, 7")

    def tile(h, c, pas):
        e(f"ds_read_b128 {v(K, 4)}, {v(VA2)}")
        if pas:
            for sp in range(2):
                e(f"ds_read_b128 {v(V + 4 * sp, 4)}, {v(VV2)} offset:{sp * 1024}")
        e(f"{MF} {v(S, 16)}, {v(K, 4)}, {v(QF + 4 * h, 4)}, {c}")
        if not pas:
            for r in range(0, 16, 2):
                e(f"v_max3_f32 {v(VM)}, {v(VM)}, {v(S + r)}, {v(S + r + 1)}")
        else:
            for r in range(16):
                e(f"v_sub_f32 {v(S + r)}, {v(S + r)}, {v(VM)}")
            for r in range(16):
                e(f"v_exp_f32 {v(S + r)}, {v(S + r)}")
            for r in range(8):
                e(f"v_cvt_pk_bf16_f32 {v(P + r)}, {v(S + 2 * r)}, {v(S + 2 * r + 1)}")
            for sp in range(2):
                e(f"{MF} {v(OA[h], 16)}, {v(V + 4 * sp, 4)}, {v(P + 4 * sp, 4)}, {v(OA[h], 16)}")
            e(f"v_sub_u32 {v(VV2)}, {v(VV2)}, {v(VVS[h])}")
        e(f"v_subrev_u32 {v(VA2)}, 4096, {v(VA2)}")

    for h in range(2):
        for pas in range(2):
            e(f"v_add_u32 {v(VA2)}, {8 * 4096 + h * 1024}, {v(VKA)}")
            if pas == 0:
                e(f"v_mov_b32 {v(VM)}, {v(VNEG)}")
            else:
                e(f"v_lshlrev_b32 {v(VV2)}, 3, {v(VVS[h])}")
                e(f"v_add_u32 {v(VV2)}, {v(VV2)}, {v(VVA[h])}")
                for r in range(16):
                    e(f"v_mov_b32 {v(OA[h] + r)}, 0")
            tile(h, v(CD, 16), pas)
            lp, done = e.newlabel("fbl"), e.newlabel("fbd")
            e(f"s_mov_b32 {s(T1)}, 0")
            e.loop_label(lp)
            e(f"s_cmp_ge_u32 {s(T1)}, {s(T0)}")
            e.branch("s_cbranch_scc1", done)
            tile(h, "0", pas)
            e(f"s_add_u32 {s(T1)}, {s(T1)}, 1")
            e.wait_lg_all()
            e.back_branch("s_branch", lp)
            e.label(done)
            e.flush_haz()
            e.nop(12)
            lab = e.newlabel("fbo")
            e(f"s_cmp_lt_u32 {s(S_T)}, 8")
            e.branch("s_cbranch_scc1", lab)
            tile(h, v(CO, 16), pas)
            e.wait_lg_all()
            e.label(lab)
            e.flush_haz()
            e.nop(12)
            if pas == 0:
                e(f"v_mov_b32 {v(VM + 1)}, {v(VM)}")
                e(f"v_permlane32_swap_b32 {v(VM)}, {v(VM + 1)}")
                e(f"v_max_f32 {v(VM)}, {v(VM)}, {v(VM + 1)}")
    e.flush_haz()
    e.nop(12)
    e.raw(f"\ts_branch {norm}")


def gemm64_finish(g, L, kind):
    e = g.e
    ACC, TMP = 32, 96
    for sl in range(1, 4):
        e(f"s_xor_b32 {s(T0)}, {s(S_W)}, {sl}")
        e(f"s_mul_i32 {s(T0)}, {s(T0)}, 12288")
        e(f"s_add_u32 {s(T0)}, {s(T0)}, {L_RED + (sl - 1) * 4096}")
        e(f"v_add_u32 {v(V_T + sl)}, {s(T0)}, {v(V_O)}")
    for sl in range(1, 4):
        for q in range(4):
            e(f"ds_write_b128 {v(V_T + sl)}, {v(ACC + 16 * sl + 4 * q, 4)} offset:{q * 1024}")
    e(f"s_mul_i32 {s(T0)}, {s(S_W)}, 12288")
    e(f"s_add_u32 {s(T0)}, {s(T0)}, {L_RED}")
    e(f"v_add_u32 {v(V_T)}, {s(T0)}, {v(V_O)}")
    e.wait_lg_all()
    e("s_barrier")
    for sl in range(3):
        for q in range(4):
            e(f"ds_read_b128 {v(TMP + 16 * sl + 4 * q, 4)}, {v(V_T)} offset:{sl * 4096 + q * 1024}")
    for sl in range(3):
        for r in range(0, 16, 2):
            e(f"v_pk_add_f32 {v(ACC + r, 2)}, {v(ACC + r, 2)}, {v(TMP + 16 * sl + r, 2)}")
    final = (kind == "D" and L == 1)
    for r in range(8):
        e(f"v_cvt_pk_bf16_f32 {v(V_RES + r)}, {v(ACC + 2 * r)}, {v(ACC + 2 * r + 1)}")
    if final:
        for sp in range(2):
            e(f"v_permlane32_swap_b32 {v(V_RES + 4 * sp)}, {v(V_RES + 4 * sp + 2)}")
            e(f"v_permlane32_swap_b32 {v(V_RES + 4 * sp + 1)}, {v(V_RES + 4 * sp + 3)}")
        e(f"v_and_b32 {v(V_T)}, 31, {v(V_LANE)}")
        e(f"v_lshlrev_b32 {v(V_T)}, 10, {v(V_T)}")
        e(f"v_lshrrev_b32 {v(V_T + 1)}, 5, {v(V_LANE)}")
        e(f"v_lshl_add_u32 {v(V_T)}, {v(V_T + 1)}, 4, {v(V_T)}")
        g.base(B2, S_OUT, 0, [(S_TF, 32768), (S_CTF, 64)])
        for sp in range(2):
            e(f"global_store_dwordx4 {v(V_T)}, {v(V_RES + 4 * sp, 4)}, {s(B2, 2)} offset:{sp * 32}")
        return
    nb = (1 if kind == "O" else 2) + 2 * L
    g.cbase(B2, C_X[nb], [(S_TL, 32768), (S_CTF, 2048)])
    g.cbase(B3, C_ST[nb], [(S_TL, 4096), (S_CTF, 256)])
    sm, sq = TMP, TMP + 2
    e(f"v_pk_add_f32 {v(sm, 2)}, {v(ACC, 2)}, {v(ACC + 2, 2)}")
    e(f"v_pk_mul_f32 {v(sq, 2)}, {v(ACC, 2)}, {v(ACC, 2)}")
    for r in range(2, 16, 2):
        if r > 2:
            e(f"v_pk_add_f32 {v(sm, 2)}, {v(sm, 2)}, {v(ACC + r, 2)}")
        e(f"v_pk_fma_f32 {v(sq, 2)}, {v(ACC + r, 2)}, {v(ACC + r, 2)}, {v(sq, 2)}")
    e(f"v_add_f32 {v(sm)}, {v(sm)}, {v(sm + 1)}")
    e(f"v_add_f32 {v(sq)}, {v(sq)}, {v(sq + 1)}")
    e(f"v_permlane32_swap_b32 {v(sm)}, {v(sq)}")
    e(f"v_add_f32 {v(sm)}, {v(sm)}, {v(sq)}")

    def st(sc):
        for sp in range(2):
            e(f"global_store_dwordx4 {v(V_O)}, {v(V_RES + 4 * sp, 4)}, {s(B2, 2)} offset:{sp * 1024}{sc}")
        e(f"global_store_dword {v(V_L4)}, {v(sm)}, {s(B3, 2)}{sc}")
    g.store_data(st)
    g.signal(4 * L + (1 if kind == "O" else 3))


def init_acc_from_res(g):
    e = g.e
    for d in range(8):
        e(f"v_lshlrev_b32 {v(32 + 2 * d)}, 16, {v(V_RES + d)}")
        e(f"v_and_b32 {v(32 + 2 * d + 1)}, 0xffff0000, {v(V_RES + d)}")


def phaseO(g, L):
    e = g.e
    init_acc_from_res(g)
    for aa in range(2):
        e(f"s_xor_b32 {s(T0)}, {s(S_TL)}, {aa}")
        g.cbase(B0 + 2 * aa, C_OB[L], [(T0, 32768), (S_W, 8192)])
    g.await_cluster(4 * L + 0)
    g.stamp(f"O{L} sync")
    LA = 4

    def ldo(k):
        for aa in range(2):
            g.load_frag(a(192 + (aa * 8 + k) * 4, 4), B0 + 2 * aa, k)
    for k in range(LA):
        ldo(k)
    if L == 0:
        g.publish_epoch()
    ring = ring_dma_ops(g, 3)
    for k in range(8):
        for b in range(2):
            for aa in range(2):
                sl = aa + 2 * b
                acc = v(32 + 16 * sl, 16)
                c = acc if (k or sl == 0) else "0"
                e(f"{MF} {acc}, {a(128 + (b * 8 + k) * 4, 4)}, {a(192 + (aa * 8 + k) * 4, 4)}, {c}")
                if sl == 0 and k + LA < 8:
                    ldo(k + LA)
                if k + LA >= 8 and sl in (0, 2, 3):
                    take(ring, 1)
    take(ring, 99)
    g.stamp(f"O{L} gemm")
    gemm64_finish(g, L, "O")
    g.stamp(f"O{L} signalled")


def phaseG(g, L):
    e = g.e
    ACC, WB, VST, VR = 32, 144, 200, 216
    CS, VM = 218, 246
    XA = 128
    nb = 1 + 2 * L
    g.cbase(B0, C_X[nb], [(S_W, 32768)])
    g.base(B2, S_WS, WCSG, [(S_J, 7168)])
    g.await_cluster(4 * L + 1)
    g.stamp(f"G{L} sync")
    LA = 6
    for k in range(3):
        g.load_frag(a(XA + 4 * k, 4), B0, k)
    load_stats(g, nb, VST)
    for k in range(3, LA):
        g.load_frag(a(XA + 4 * k, 4), B0, k)

    def rdw(k, t):
        off = L_RING + ((k >> 2) % 5) * 28672 + (k & 3) * 7168 + t * 1024
        va, imm = lds_addr(off)
        e(f"ds_read_b128 {v(WB + 28 * (k & 1) + 4 * t, 4)}, {va} offset:{imm}")

    for t in range(7):
        rdw(0, t)
    fill = ring_dma_ops(g, 4)
    side = stats_ops(g, VST, VR, VM)
    side.append(lambda: e(f"v_mul_f32 {v(VR)}, {v(VR)}, {v(VR)}"))
    wd = []
    cs = [(lambda t=t: g.load_frag(v(CS + 4 * t, 4), B2, t)) for t in range(7)]
    for k in range(32):
        c = k >> 2
        if (k & 3) == 3 and c + 1 < 8:
            if c + 1 >= 4:
                e.wait_vm(g.ring_tok[c + 1])
                e("s_barrier")
            elif c >= 1:
                e("s_barrier")
            if c >= 1 and c + 4 < 8:
                assert not fill
                fill = ring_dma_ops(g, c + 4)
        if k >= 2 and k % 2 == 0 and k <= 24:
            m = (k - 2) // 2
            wd += [(lambda b=b, m=m: g.load_frag(a(8 * (16 + m) + 4 * b, 4), S_WD[b], 16 + m)) for b in range(2)]
        xl = [(lambda kk=k + LA: g.load_frag(a(XA + 4 * kk, 4), B0, kk))] if k + LA < 32 else []
        for t in range(7):
            e(f"{MF} {v(ACC + 16 * t, 16)}, {v(WB + 28 * (k & 1) + 4 * t, 4)}, {a(XA + 4 * k, 4)}, {v(ACC + 16 * t, 16) if k else 0}")
            if k + 1 < 32:
                rdw(k + 1, t)
            if t in (0, 2, 4):
                for q in (xl, fill, cs if k >= 19 else [], wd):
                    if q:
                        take(q, 1)
                        break
            if t in (1, 3, 5) and k >= 4:
                take(side, 1)
    assert not wd and not cs
    assert not fill and not side
    g.stamp(f"G{L} gemm")
    g.cbase(B0, C_HB[L], [(S_W, 114688), (S_J, 7168)])
    HF_ = WB

    def epi(t):
        A = ACC + 16 * t
        for r in range(0, 8, 2):
            e(f"v_pk_mul_f32 {v(A + r, 2)}, {v(A + r, 2)}, {v(A + 8 + r, 2)}")
        for r in range(0, 8, 2):
            e(f"v_pk_mul_f32 {v(A + r, 2)}, {v(A + r, 2)}, {v(VR, 2)} op_sel_hi:[1,0]")
        for r in range(4):
            e(f"v_cvt_pk_bf16_f32 {v(HF_ + 4 * t + r)}, {v(A + 2 * r)}, {v(A + 2 * r + 1)}")
    for t in range(7):
        e(f"{MF} {v(ACC + 16 * t, 16)}, {v(CS + 4 * t, 4)}, {v(VM, 4)}, {v(ACC + 16 * t, 16)}")
        if t >= 2:
            epi(t - 2)
    epi(5)
    epi(6)

    def st(sc):
        for t in range(7):
            vo, imm = g.frag_addr(t)
            e(f"global_store_dwordx4 {vo}, {v(HF_ + 4 * t, 4)}, {s(B0, 2)} offset:{imm}{sc}")
    g.store_data(st)
    g.signal(4 * L + 2)
    g.stamp(f"G{L} signalled")


def phaseD(g, L):
    e = g.e
    HR, NS, LA = 96, 20, 5
    init_acc_from_res(g)
    for aa in range(2):
        e(f"s_xor_b32 {s(T0)}, {s(S_TL)}, {aa}")
        g.cbase(B0 + 2 * aa, C_HB[L], [(T0, 114688), (S_W, 28672)])
    g.await_cluster(4 * L + 2)
    g.stamp(f"D{L} sync")

    def hreg(k, aa):
        return v(HR + (k % NS) * 8 + 4 * aa, 4)

    def ldh(k):
        for aa in range(2):
            g.load_frag(hreg(k, aa), B0 + 2 * aa, k)
    for k in range(LA):
        ldh(k)
    wq = wq_ops(g) if L == 0 else []
    for k in range(28):
        for b in range(2):
            for aa in range(2):
                sl = aa + 2 * b
                acc = v(32 + 16 * sl, 16)
                c = acc if (k or sl == 0) else "0"
                e(f"{MF} {acc}, {a(8 * k + 4 * b, 4)}, {hreg(k, aa)}, {c}")
                if k + LA < 28 and sl in (0, 2):
                    g.load_frag(hreg(k + LA, sl >> 1), B0 + 2 * (sl >> 1), k + LA)
                if k >= 4 and sl == 3:
                    take(wq, 1)
    assert not wq
    g.stamp(f"D{L} gemm")
    gemm64_finish(g, L, "D")
    g.stamp(f"D{L} signalled")
```

```python
import sys, os
sys.path.insert(0, os.path.dirname(os.path.abspath(__file__)))
from asmlib import Emitter, v, a, s

KNAME = "interleave_layers__sliding_block__glu_gated_bilinear__prompt_kernel"

EW = 0x0
XF = 0x1000
CF = 0x3000
HF = 0xB000
PF = 0x10000
STAMP = 0x20000
WCSQ = 0xA0000
WCSG = 0xB0000
WQ = 0x100000
WO = 0x280000
WG = 0x300000
WD = 0x680000
CL0 = 0x900000
CLS = 0x240000
C_X = [0x0, 0x20000, 0x40000, 0x60000]
C_ST = [0x80000, 0x84000, 0x88000, 0x8C000]
C_OB = [0x90000, 0xB0000]
C_KV = [0xD0000, 0x110000]
C_HB = [0x150000, 0x1C0000]

L_WQ = 0
L_KV = 96 * 1024
L_ONES = 144 * 1024
L_RS = L_ONES + 2048
L_RING = 0
L_RED = 112 * 1024
L_PREP = 96 * 1024
LDS_BYTES = 160 * 1024

S_X, S_WQKV, S_WO, S_GATE, S_UP, S_DOWN, S_OUT, S_DBG, S_WS = 4, 6, 8, 10, 12, 14, 16, 18, 20
S_I, S_J, S_W, S_MODE, S_DEAD, S_T, S_TF, S_CTF = 22, 23, 24, 25, 26, 27, 28, 29
B0, B1, B2, B3, B4 = 30, 32, 34, 36, 38
T0, T1, T2, T3, T4, T5, T6, T7 = 40, 41, 42, 43, 44, 45, 46, 47
S_R = 48
S_SPIN = 49
S_XCC = 50
S_EPOCH = 51
S_TL = 70
S_WD = (72, 74)
S_WOB = (76, 78)
S_M1, S_M2 = 52, 54
U0, U1, U2, U3, U4, U5, U6, U7 = 80, 81, 82, 83, 84, 85, 86, 87

V_LANE, V_L4 = 0, 1
V_O = 2
V_RES = 10
V_RHI = 18
V_RH2 = 19
V_T = 20

SPIN_LIMIT = 400000


class Gen:
    def __init__(self, stop_after=None, stamps=False, force_safe=False, force_fallback=False):
        self.e = Emitter()
        self.stop_after = stop_after
        self.stamps = stamps
        self.force_safe = force_safe
        self.force_fallback = force_fallback
        self.nstamp = 0
        self.deferred = []

    def base(self, pair, ptr, const=0, terms=()):
        e = self.e
        have = False
        for (sr, mul) in terms:
            dst = T7 if have else T6
            if mul == 1:
                e(f"s_mov_b32 {s(dst)}, {s(sr)}")
            elif mul & (mul - 1) == 0:
                e(f"s_lshl_b32 {s(dst)}, {s(sr)}, {mul.bit_length() - 1}")
            else:
                e(f"s_mul_i32 {s(dst)}, {s(sr)}, {mul}")
            if have:
                e(f"s_add_u32 {s(T6)}, {s(T6)}, {s(T7)}")
            have = True
        if have and const:
            e(f"s_add_u32 {s(T6)}, {s(T6)}, {const}")
        if have:
            e(f"s_add_u32 {s(pair)}, {s(ptr)}, {s(T6)}")
        else:
            e(f"s_add_u32 {s(pair)}, {s(ptr)}, {const}")
        e(f"s_addc_u32 {s(pair + 1)}, {s(ptr + 1)}, 0")

    def cbase(self, pair, off, terms=()):
        self.base(pair, S_WS, CL0 + off, [(S_I, CLS)] + list(terms))

    def bump(self, pair, const):
        e = self.e
        e(f"s_add_u32 {s(pair)}, {s(pair)}, {const}")
        e(f"s_addc_u32 {s(pair + 1)}, {s(pair + 1)}, 0")

    def frag_addr(self, n):
        return v(V_O + (n >> 2)), (n & 3) * 1024

    def load_frag(self, dst, pair, n, extra=""):
        vo, imm = self.frag_addr(n)
        return self.e(f"global_load_dwordx4 {dst}, {vo}, {s(pair, 2)} offset:{imm}{extra}")

    def store_data(self, emit):
        emit(" sc1")

    def store_modal(self, emit):
        e = self.e
        if self.force_safe:
            emit(" sc1")
            return
        e(f"s_cmp_eq_u32 {s(S_MODE)}, 1")
        e.either("s_cbranch_scc1", lambda: emit(""), lambda: emit(" sc1"))

    def stamp(self, name, idx=None):
        if not self.stamps:
            return
        e = self.e
        if idx is None:
            n = self.nstamp
            self.nstamp += 1
        else:
            n = idx
        e(f"s_mov_b64 {s(S_M2, 2)}, exec")
        e.raw(f"\ts_memrealtime {s(S_M1, 2)}")
        e.raw(f"\ts_memtime {s(68, 2)}")
        e.raw("\ts_waitcnt lgkmcnt(0)")
        e.lg_done = e.lg_n
        e(f"s_lshl_b32 {s(T6)}, {s(S_R)}, 2")
        e(f"s_add_u32 {s(T6)}, {s(T6)}, {s(S_W)}")
        e(f"s_lshl_b32 {s(T6)}, {s(T6)}, 9")
        e(f"v_mov_b32 {v(V_T + 11)}, {s(T6)}")
        e(f"v_mov_b32 {v(252)}, {s(S_M1)}") if False else None
        e(f"v_mov_b32 {v(V_T + 10)}, {s(S_M1)}")
        e(f"s_mov_b64 exec, 1")
        e(f"global_store_dword {v(V_T + 11)}, {v(V_T + 10)}, {s(56, 2)} offset:{n * 8}")
        e(f"v_mov_b32 {v(V_T + 10)}, {s(68)}")
        e(f"global_store_dword {v(V_T + 11)}, {v(V_T + 10)}, {s(56, 2)} offset:{n * 8 + 4}")
        e(f"s_mov_b64 exec, {s(S_M2, 2)}")
        print(f"stamp {n}: {name}", file=sys.stderr)

    def spin(self, body, pre=None):
        e = self.e
        lp, out = e.newlabel("poll"), e.newlabel("pollout")
        e(f"s_mov_b32 {s(S_SPIN)}, 0")
        if pre:
            pre()
        e.loop_label(lp)
        body()
        e.raw(f"\ts_cbranch_vccz {out}")
        e.raw(f"\ts_add_u32 {s(S_SPIN)}, {s(S_SPIN)}, 1")
        e.raw(f"\ts_cmp_ge_u32 {s(S_SPIN)}, {s(S_DEAD)}")
        e.raw(f"\ts_cbranch_scc0 {lp}")
        e.raw(f"\ts_mov_b32 {s(S_DEAD)}, 1")
        e.raw(f"{out}:")
        e.vm_done = e.vm_n
        e.pos += 8
        e.hist = []

    def poll(self, pair, voff, lowmask=False):
        e = self.e
        vt = V_T + 8

        def body():
            e.raw(f"\tglobal_load_dword {v(vt)}, {voff}, {s(pair, 2)} sc1")
            e.raw("\ts_waitcnt vmcnt(0)")
            if lowmask:
                e.raw(f"\tv_and_b32 {v(vt + 1)}, -16, {v(vt)}")
                e.raw(f"\tv_cmp_ne_u32 vcc, {s(S_EPOCH)}, {v(vt + 1)}")
            else:
                e.raw(f"\tv_cmp_ne_u32 vcc, {s(S_EPOCH)}, {v(vt)}")
            e.raw("\ts_nop 4")
        self.spin(body)

    def flag_store(self, pair, sc, val=None):
        e = self.e
        e(f"v_mov_b32 {v(V_T + 8)}, {s(S_EPOCH if val is None else val)}")
        e(f"v_mov_b32 {v(V_T + 9)}, 0")
        e("s_mov_b64 exec, 1")
        if sc is None:
            self.store_modal(lambda m: e(f"global_store_dword {v(V_T + 9)}, {v(V_T + 8)}, {s(pair, 2)}{m}"))
        else:
            e(f"global_store_dword {v(V_T + 9)}, {v(V_T + 8)}, {s(pair, 2)}{sc}")
        e("s_mov_b64 exec, -1")

    def signal(self, phase):
        e = self.e
        self.base(B4, S_WS, CF + phase * 4096, [(S_I, 256), (S_J, 16), (S_W, 4)])
        e.wait_all()
        self.flag_store(B4, None)

    def await_cluster(self, phase):
        self.base(B4, S_WS, CF + phase * 4096, [(S_I, 256)])
        self.poll(B4, v(V_L4))

    def init(self):
        e = self.e
        e("s_cmp_ge_u32 s2, 256")
        e.branch("s_cbranch_scc1", "L_exit")
        for ptr, off in ((S_X, 0), (S_WQKV, 8), (S_WO, 16), (S_GATE, 32), (S_UP, 40), (S_DOWN, 48),
                         (S_OUT, 56), (S_DBG, 64), (S_WS, 72)):
            e(f"s_load_dwordx2 {s(ptr, 2)}, s[0:1], {off}")
        e(f"v_lshrrev_b32 {v(V_T)}, 6, v0")
        e(f"v_and_b32 {v(V_LANE)}, 63, v0")
        e(f"v_readfirstlane_b32 {s(S_W)}, {v(V_T)}")
        e(f"v_lshlrev_b32 {v(V_L4)}, 2, {v(V_LANE)}")
        e(f"v_lshlrev_b32 {v(V_O)}, 4, {v(V_LANE)}")
        for n in range(1, 8):
            e(f"v_add_u32 {v(V_O + n)}, {n * 4096}, {v(V_O)}")
        e(f"v_add_u32 {v(V_RHI)}, 57344, {v(V_O)}")
        e(f"v_add_u32 {v(V_RH2)}, 114688, {v(V_O)}")
        e(f"s_and_b32 {s(T0)}, s2, 7")
        e(f"s_lshr_b32 {s(T1)}, s2, 3")
        e(f"s_and_b32 {s(S_J)}, {s(T1)}, 15")
        e(f"s_lshr_b32 {s(T1)}, {s(T1)}, 4")
        e(f"s_lshl_b32 {s(T0)}, {s(T0)}, 1")
        e(f"s_add_u32 {s(S_I)}, {s(T0)}, {s(T1)}")
        e(f"s_lshl_b32 {s(S_R)}, {s(S_I)}, 4")
        e(f"s_add_u32 {s(S_R)}, {s(S_R)}, {s(S_J)}")
        e(f"s_lshl_b32 {s(S_T)}, {s(S_I)}, 2")
        e(f"s_add_u32 {s(S_T)}, {s(S_T)}, {s(S_W)}")
        e(f"s_and_b32 {s(T0)}, {s(S_J)}, 1")
        e(f"s_lshl_b32 {s(T0)}, {s(T0)}, 1")
        e(f"s_and_b32 {s(T1)}, {s(S_W)}, 1")
        e(f"s_add_u32 {s(T0)}, {s(T0)}, {s(T1)}")
        e(f"s_lshl_b32 {s(S_TF)}, {s(S_I)}, 2")
        e(f"s_add_u32 {s(S_TF)}, {s(S_TF)}, {s(T0)}")
        e(f"s_lshr_b32 {s(T0)}, {s(S_J)}, 1")
        e(f"s_lshl_b32 {s(T0)}, {s(T0)}, 1")
        e(f"s_lshr_b32 {s(T1)}, {s(S_W)}, 1")
        e(f"s_add_u32 {s(S_CTF)}, {s(T0)}, {s(T1)}")
        e(f"s_mov_b32 {s(S_DEAD)}, {SPIN_LIMIT}")
        e(f"s_getreg_b32 {s(S_XCC)}, hwreg(HW_REG_XCC_ID, 0, 4)")
        e.wait_lg_all()
        if self.stamps:
            self.base(56, S_WS, STAMP)
        e(f"s_and_b32 {s(S_TL)}, {s(S_TF)}, 3")
        e(f"v_mov_b32 {v(V_T)}, {EW}")
        e(f"global_load_dword {v(250)}, {v(V_T)}, {s(S_WS, 2)} sc1")


    def only_if_zero(self, sreg, body):
        e = self.e
        lab = e.newlabel("skip")
        e.flush_haz()
        st = e.save_cnt()
        e(f"s_cmp_lg_u32 {s(sreg)}, 0")
        e.branch("s_cbranch_scc1", lab)
        body()
        e.flush_haz()
        e.snaps.pop(lab, None)
        e.raw(f"{lab}:")
        e.restore_cnt(st)

    def raw_store_flag(self, pair, voff, vval, execmask):
        e = self.e
        e.raw(f"\ts_mov_b64 exec, {execmask}")
        e.raw(f"\tglobal_store_dword {voff}, {vval}, {s(pair, 2)} sc1")
        e.raw("\ts_mov_b64 exec, -1")

    def xpiece_finish(self, VX):
        e = self.e
        lo, hi, sm, sq = V_T + 4, V_T + 5, V_T + 6, V_T + 7
        for r in range(8):
            e(f"v_lshlrev_b32 {v(lo)}, 16, {v(VX + r)}")
            e(f"v_and_b32 {v(hi)}, 0xffff0000, {v(VX + r)}")
            if r == 0:
                e(f"v_add_f32 {v(sm)}, {v(lo)}, {v(hi)}")
                e(f"v_mul_f32 {v(sq)}, {v(lo)}, {v(lo)}")
            else:
                e(f"v_add_f32 {v(sm)}, {v(sm)}, {v(lo)}")
                e(f"v_fmac_f32 {v(sq)}, {v(lo)}, {v(lo)}")
                e(f"v_add_f32 {v(sm)}, {v(sm)}, {v(hi)}")
            e(f"v_fmac_f32 {v(sq)}, {v(hi)}, {v(hi)}")
        e(f"v_permlane32_swap_b32 {v(sm)}, {v(sq)}")
        for sp in range(2):
            e(f"v_permlane32_swap_b32 {v(VX + 4 * sp)}, {v(VX + 4 * sp + 2)}")
            e(f"v_permlane32_swap_b32 {v(VX + 4 * sp + 1)}, {v(VX + 4 * sp + 3)}")
        e(f"v_add_f32 {v(sm)}, {v(sm)}, {v(sq)}")
        self.cbase(B3, C_X[0], [(S_W, 32768), (S_J, 2048)])
        self.cbase(B4, C_ST[0], [(S_W, 4096), (S_J, 256)])
        e(f"global_store_dwordx4 {v(V_O)}, {v(VX, 4)}, {s(B3, 2)} sc1")
        e(f"global_store_dwordx4 {v(V_O)}, {v(VX + 4, 4)}, {s(B3, 2)} offset:1024 sc1")
        return e(f"global_store_dword {v(V_L4)}, {v(sm)}, {s(B4, 2)} sc1")

    def xflag(self, xtok):
        e = self.e
        self.base(B3, S_WS, XF, [(S_I, 256), (S_J, 16), (S_W, 4)])
        e(f"s_or_b32 {s(T0)}, {s(S_EPOCH)}, {s(S_XCC)}")
        e.wait_vm(xtok)
        self.flag_store(B3, " sc1", T0)

    def prep(self):
        e = self.e
        VX = 32
        VA = 40
        VR = 48
        VF = 52
        VS = 84
        VONE = 100
        VC = 104
        tn, th = V_T + 2, V_T + 3
        e(f"v_and_b32 {v(tn)}, 31, {v(V_LANE)}")
        e(f"v_lshrrev_b32 {v(th)}, 5, {v(V_LANE)}")
        e(f"v_lshlrev_b32 {v(V_T + 4)}, 10, {v(tn)}")
        e(f"v_lshl_add_u32 {v(V_T + 4)}, {v(th)}, 4, {v(V_T + 4)}")
        self.base(B0, S_X, 0, [(S_T, 32768), (S_J, 64)])
        e(f"global_load_dwordx4 {v(VX, 4)}, {v(V_T + 4)}, {s(B0, 2)}")
        e(f"global_load_dwordx4 {v(VX + 4, 4)}, {v(V_T + 4)}, {s(B0, 2)} offset:32")
        SG, J = U0, U1
        STR, DST, TYP, HAS = U2, U3, U4, U5
        lq, lg, lo_, lgo, lno, ljoin = [e.newlabel(x) for x in ("jq", "jg", "jo", "jgo", "jno", "jjoin")]
        e(f"s_and_b32 {s(SG)}, {s(S_R)}, 63")
        e(f"s_lshr_b32 {s(J)}, {s(S_R)}, 6")
        e(f"s_cmp_ge_u32 {s(SG)}, 58")
        e.branch("s_cbranch_scc1", lno)
        st_nojob = e.save_cnt()
        self.base(B2, S_WS, WCSQ)
        e(f"s_lshl_b32 {s(T0)}, {s(J)}, 2")
        e(f"s_add_u32 {s(T0)}, {s(T0)}, {s(S_W)}")
        e(f"s_cmp_lt_u32 {s(SG)}, 12")
        e.branch("s_cbranch_scc1", lq)
        e(f"s_cmp_lt_u32 {s(SG)}, 40")
        e.branch("s_cbranch_scc1", lg)
        e(f"s_mov_b32 {s(STR)}, 1024")
        e(f"s_mov_b32 {s(DST)}, 1024")
        e(f"s_mov_b32 {s(TYP)}, 0")
        e(f"s_mov_b32 {s(HAS)}, 0")
        e(f"s_cmp_lt_u32 {s(SG)}, 44")
        e.branch("s_cbranch_scc1", lo_)
        e(f"s_sub_u32 {s(T1)}, {s(SG)}, 44")
        self.base(B0, S_DOWN, 0, [(T1, 131072), (J, 256)])
        self.base(B1, S_WS, WD, [(T0, 114688), (T1, 8192)])
        e.branch("s_branch", lgo)
        e.hist = []
        e.label(lo_)
        e(f"s_sub_u32 {s(T1)}, {s(SG)}, 40")
        self.base(B0, S_WO, 0, [(T1, 131072), (J, 256)])
        self.base(B1, S_WS, WO, [(T0, 32768), (T1, 8192)])
        e.branch("s_branch", lgo)
        e.hist = []
        e.label(lq)
        e(f"s_mov_b32 {s(STR)}, 3072")
        e(f"s_mov_b32 {s(DST)}, 3072")
        e(f"s_mov_b32 {s(TYP)}, 0")
        e(f"s_mov_b32 {s(HAS)}, 1")
        e(f"s_lshr_b32 {s(T1)}, {s(SG)}, 2")
        e(f"s_and_b32 {s(T2)}, {s(SG)}, 3")
        self.base(B0, S_WQKV, 0, [(T2, 128 * 3072), (T1, 1024), (J, 256)])
        e(f"s_add_u32 {s(T3)}, {s(T1)}, 2")
        e(f"s_cmp_ge_u32 {s(T3)}, 3")
        e(f"s_cselect_b32 {s(T4)}, 3, 0")
        e(f"s_sub_u32 {s(T3)}, {s(T3)}, {s(T4)}")
        self.base(B1, S_WS, WQ, [(T0, 98304), (T2, 8 * 3072), (T3, 1024)])
        e(f"s_lshr_b32 {s(T4)}, {s(T2)}, 1")
        e(f"s_and_b32 {s(T5)}, {s(T2)}, 1")
        self.base(B2, S_WS, WCSQ, [(T0, 3072), (T3, 1024), (T4, 512), (T5, 8)])
        e.branch("s_branch", lgo)
        e.hist = []
        e.label(lg)
        e(f"s_mov_b32 {s(STR)}, 3584")
        e(f"s_mov_b32 {s(DST)}, 7168")
        e(f"s_mov_b32 {s(TYP)}, 1")
        e(f"s_mov_b32 {s(HAS)}, 1")
        e(f"s_sub_u32 {s(T1)}, {s(SG)}, 12")
        e(f"s_and_b32 {s(T2)}, {s(T1)}, 3")
        e(f"s_lshr_b32 {s(T1)}, {s(T1)}, 2")
        e(f"s_mul_i32 {s(T3)}, {s(J)}, 7")
        e(f"s_add_u32 {s(T1)}, {s(T1)}, {s(T3)}")
        lup, lud = e.newlabel("jup"), e.newlabel("jupd")
        e(f"s_cmp_ge_u32 {s(S_W)}, 2")
        e.branch("s_cbranch_scc1", lup)
        self.base(B0, S_GATE, 0, [(T2, 128 * 3584), (T1, 128)])
        e.branch("s_branch", lud)
        e.hist = []
        e.label(lup)
        self.base(B0, S_UP, 0, [(T2, 128 * 3584), (T1, 128)])
        e.label(lud)
        e(f"s_lshl_b32 {s(T3)}, {s(T1)}, 2")
        e(f"s_add_u32 {s(T3)}, {s(T3)}, {s(S_W)}")
        e(f"s_mul_i32 {s(T4)}, {s(T3)}, 9363")
        e(f"s_lshr_b32 {s(T4)}, {s(T4)}, 16")
        e(f"s_mul_i32 {s(T5)}, {s(T4)}, 7")
        e(f"s_sub_u32 {s(T5)}, {s(T3)}, {s(T5)}")
        self.base(B1, S_WS, WG, [(T4, 229376), (T2, 8 * 7168), (T5, 1024)])
        e(f"s_lshr_b32 {s(T4)}, {s(T2)}, 1")
        e(f"s_and_b32 {s(T5)}, {s(T2)}, 1")
        self.base(B2, S_WS, WCSG, [(T3, 1024), (T4, 512), (T5, 8)])
        e.label(lgo)
        ta, tb, tc = V_T + 5, V_T + 6, V_T + 7
        rr, cc, g1 = VC + 2, VC + 3, VC + 4
        e(f"v_and_b32 {v(rr)}, 15, {v(V_LANE)}")
        e(f"v_lshrrev_b32 {v(rr)}, 2, {v(rr)}")
        e(f"v_and_b32 {v(cc)}, 3, {v(V_LANE)}")
        e(f"v_lshlrev_b32 {v(cc)}, 3, {v(cc)}")
        e(f"v_bfe_u32 {v(g1)}, {v(V_LANE)}, 4, 1")
        e(f"v_lshl_add_u32 {v(VC + 5)}, {v(th)}, 2, {v(rr)}")
        la, lj = e.newlabel("tyA"), e.newlabel("tyJ")
        e(f"s_cmp_eq_u32 {s(TYP)}, 0")
        e.branch("s_cbranch_scc1", la)
        e(f"s_and_b32 {s(T0)}, {s(S_W)}, 1")
        e(f"s_lshl_b32 {s(T0)}, {s(T0)}, 6")
        e(f"s_lshr_b32 {s(T1)}, {s(S_W)}, 1")
        e(f"s_lshl_b32 {s(T1)}, {s(T1)}, 1")
        e(f"v_lshrrev_b32 {v(ta)}, 3, {v(V_LANE)}")
        e(f"v_add_u32 {v(ta)}, {s(T0)}, {v(ta)}")
        e(f"v_mul_lo_u32 {v(ta)}, {v(ta)}, {s(STR)}")
        e(f"v_or_b32 {v(tb)}, {s(T1)}, {v(g1)}")
        e(f"v_lshlrev_b32 {v(tb)}, 1, {v(tb)}")
        e(f"v_and_b32 {v(tc)}, 7, {v(V_LANE)}")
        e(f"v_xor_b32 {v(tc)}, {v(tc)}, {v(tb)}")
        e(f"v_lshl_add_u32 {v(VA)}, {v(tc)}, 4, {v(ta)}")
        e(f"s_lshl_b32 {s(U6)}, {s(STR)}, 3")
        e(f"v_lshrrev_b32 {v(ta)}, 1, {v(rr)}")
        e(f"v_lshl_or_b32 {v(ta)}, {v(g1)}, 1, {v(ta)}")
        e(f"v_xor_b32 {v(ta)}, {s(S_W)}, {v(ta)}")
        e(f"v_lshlrev_b32 {v(ta)}, 5, {v(ta)}")
        e(f"v_lshl_add_u32 {v(ta)}, {v(VC + 5)}, 7, {v(ta)}")
        e(f"v_lshl_add_u32 {v(ta)}, {v(g1)}, 14, {v(ta)}")
        e(f"v_add_u32 {v(ta)}, {v(ta)}, {v(cc)}")
        e(f"v_add_u32 {v(VR)}, {L_PREP}, {v(ta)}")
        e.branch("s_branch", lj)
        e.hist = []
        e.label(la)
        e(f"s_lshl_b32 {s(T0)}, {s(S_W)}, 5")
        e(f"v_lshrrev_b32 {v(tb)}, 4, {v(V_LANE)}")
        e(f"v_add_u32 {v(ta)}, {s(T0)}, {v(tb)}")
        e(f"v_mul_lo_u32 {v(ta)}, {v(ta)}, {s(STR)}")
        e(f"v_lshlrev_b32 {v(tb)}, 2, {v(tb)}")
        e(f"v_and_b32 {v(tc)}, 15, {v(V_LANE)}")
        e(f"v_xor_b32 {v(tc)}, {v(tc)}, {v(tb)}")
        e(f"v_lshl_add_u32 {v(VA)}, {v(tc)}, 4, {v(ta)}")
        e(f"s_lshl_b32 {s(U6)}, {s(STR)}, 2")
        e(f"v_xor_b32 {v(ta)}, {s(S_W)}, {v(rr)}")
        e(f"v_lshlrev_b32 {v(ta)}, 6, {v(ta)}")
        e(f"v_lshl_add_u32 {v(ta)}, {v(VC + 5)}, 8, {v(ta)}")
        e(f"v_lshl_add_u32 {v(ta)}, {v(g1)}, 5, {v(ta)}")
        e(f"v_add_u32 {v(ta)}, {v(ta)}, {v(cc)}")
        e(f"v_add_u32 {v(VR)}, {L_PREP}, {v(ta)}")
        e.label(lj)
        e(f"s_lshl_b32 {s(U7)}, {s(S_W)}, 13")
        dtok = None
        for p in range(8):
            if p:
                e(f"v_add_u32 {v(VA + p)}, {s(U6)}, {v(VA + p - 1)}")
            e(f"s_add_u32 m0, {s(U7)}, {L_PREP + p * 1024}")
            dtok = e(f"global_load_lds_dwordx4 {v(VA + p)}, {s(B0, 2)}")
        for r in range(4):
            e(f"v_mov_b32 {v(VONE + r)}, 0x3f803f80")

        def epoch():
            e(f"v_readfirstlane_b32 {s(S_EPOCH)}, {v(250)}")
            e(f"s_and_b32 {s(S_EPOCH)}, {s(S_EPOCH)}, -16")
            e(f"s_add_u32 {s(S_EPOCH)}, {s(S_EPOCH)}, 16")
        epoch()
        xtok = self.xpiece_finish(VX)
        e.wait_vm(dtok)
        e("s_barrier")
        self.stamp("prep dma in", 60)

        def reads(ustep, hstep):
            def f():
                for u in range(8):
                    for hf in range(2):
                        e(f"ds_read_b64_tr_b16 {v(VF + 4 * u + 2 * hf, 2)}, {v(VR)} offset:{u * ustep + hf * hstep}")
            return f
        e(f"s_cmp_eq_u32 {s(TYP)}, 0")
        e.either("s_cbranch_scc1", reads(4096, 2048), reads(2048, 1024))
        for u in range(8):
            e(f"global_store_dwordx4 {v(V_O)}, {v(VF + 4 * u, 4)}, {s(B1, 2)} sc1")
            if u < 7:
                e(f"s_add_u32 {s(B1)}, {s(B1)}, {s(DST)}")
                e(f"s_addc_u32 {s(B1 + 1)}, {s(B1 + 1)}, 0")
            e(f"v_mfma_f32_32x32x16_bf16 {v(VS, 16)}, {v(VONE, 4)}, {v(VF + 4 * u, 4)}, {v(VS, 16) if u else 0}")
        e(f"v_cvt_pk_bf16_f32 {v(VC)}, {v(VS)}, {v(VS)}")
        e(f"v_lshlrev_b32 {v(VC + 2)}, 16, {v(VC)}")
        e(f"v_sub_f32 {v(VC + 2)}, {v(VS)}, {v(VC + 2)}")
        e(f"v_cvt_pk_bf16_f32 {v(VC + 1)}, {v(VC + 2)}, {v(VC + 2)}")
        e(f"v_lshlrev_b32 {v(VC + 3)}, 4, {v(tn)}")

        def csstore():
            e.raw("\ts_mov_b32 exec_hi, 0")
            e.raw(f"\tglobal_store_dwordx2 {v(VC + 3)}, {v(VC, 2)}, {s(B2, 2)} sc1")
            e.raw("\ts_mov_b32 exec_hi, -1")
        e(f"s_xor_b32 {s(T0)}, {s(HAS)}, 1")
        self.only_if_zero(T0, csstore)
        self.xflag(xtok)
        e.wait_all()
        e.branch("s_branch", ljoin)
        e.snaps.pop(ljoin, None)
        e.hist = []
        e.restore_cnt(st_nojob)
        e.label(lno)
        epoch()
        xtok = self.xpiece_finish(VX)
        self.xflag(xtok)
        e.wait_all()
        e.flush_haz()
        e.raw(f"{ljoin}:")
        e.pend = {}
        e("s_barrier")
        self.stamp("prep stored", 61)

        def pf():
            self.base(B3, S_WS, PF, [(S_R, 4)])
            e(f"v_lshlrev_b32 {v(V_T + 8)}, 10, {v(V_LANE)}")
            e(f"v_mov_b32 {v(V_T + 9)}, {s(S_EPOCH)}")
            self.raw_store_flag(B3, v(V_T + 8), v(V_T + 9), "0xffff")
            self.base(B4, S_WS, XF, [(S_I, 256)])
            self.poll(B4, v(V_L4), lowmask=True)
            e(f"s_or_b32 {s(T0)}, {s(S_EPOCH)}, {s(S_XCC)}")
            e(f"v_cmp_ne_u32 vcc, {s(T0)}, {v(V_T + 8)}")
            e("s_cmp_eq_u64 vcc, 0")
            e(f"s_cselect_b32 {s(T0)}, 1, 0")
            e(f"v_mov_b32 {v(V_T + 8)}, {s(T0)}")
            e(f"v_mov_b32 {v(V_T + 9)}, {L_RS}")
            e(f"ds_write_b32 {v(V_T + 9)}, {v(V_T + 8)}")
            e.wait_lg_all()
        self.only_if_zero(S_W, pf)
        e("s_barrier")
        e(f"v_mov_b32 {v(V_T + 9)}, {L_RS}")
        e(f"ds_read_b32 {v(V_T + 8)}, {v(V_T + 9)}")
        e(f"v_readfirstlane_b32 {s(S_MODE)}, {v(V_T + 8)}")
        for b in range(2):
            e(f"s_xor_b32 {s(T0)}, {s(S_CTF)}, {b}")
            self.base(S_WD[b], S_WS, WD, [(T0, 114688), (S_W, 28672)])
            self.base(S_WOB[b], S_WS, WO, [(T0, 32768), (S_W, 8192)])

    def await_jobs(self):
        e = self.e

        def body():
            e(f"s_lshr_b32 {s(T0)}, {s(S_J)}, 2")
            self.base(B4, S_WS, PF, [(S_I, 1024), (T0, 256)])
            self.poll(B4, v(V_L4))
        self.only_if_zero(S_W, body)
        e("s_barrier")

    def publish_epoch(self):
        e = self.e
        e(f"s_or_b32 {s(T0)}, {s(S_R)}, {s(S_W)}")

        def body():
            e(f"v_mov_b32 {v(V_T + 8)}, {EW}")
            e(f"v_mov_b32 {v(V_T + 9)}, {s(S_EPOCH)}")
            self.raw_store_flag(S_WS, v(V_T + 8), v(V_T + 9), "1")
        self.only_if_zero(T0, body)

    def finish(self):
        e = self.e
        e.label("L_exit")
        e.raw("\ts_endpgm")
        for f in self.deferred:
            f()

    def build(self):
        from phases import phaseQ, phaseO, phaseG, phaseD
        g = self
        g.init()
        g.stamp("start")
        g.prep()
        seq = []
        for L in range(2):
            seq += [("Q", L), ("O", L), ("G", L), ("D", L)]
        for n, (ph, L) in enumerate(seq):
            if self.stop_after is not None and n >= self.stop_after:
                break
            {"Q": phaseQ, "O": phaseO, "G": phaseG, "D": phaseD}[ph](g, L)
        g.e.wait_all()
        g.finish()
        return self.wrap(g.e.text())

    def wrap(self, body):
        hdr = f"""; Fused 2 x (sliding-window attention block + bilinear GLU block), one persistent launch.
; @launch grid=(256,1,1) block=(256,1,1) lds={LDS_BYTES}
.amdgcn_target "amdgcn-amd-amdhsa--gfx950"
.text
.globl {KNAME}
.p2align 8
.type {KNAME},@function
{KNAME}:
"""
        tail = f""".section .rodata,"a"
.p2align 6
.amdhsa_kernel {KNAME}
  .amdhsa_next_free_vgpr 512
  .amdhsa_next_free_sgpr 102
  .amdhsa_accum_offset 256
  .amdhsa_group_segment_fixed_size 0
  .amdhsa_kernarg_size 80
  .amdhsa_user_sgpr_count 2
  .amdhsa_user_sgpr_kernarg_segment_ptr 1
  .amdhsa_system_sgpr_workgroup_id_x 1
.end_amdhsa_kernel
"""
        return hdr + body + tail


if __name__ == "__main__":
    import argparse
    ap = argparse.ArgumentParser()
    ap.add_argument("-o", default="interleave_layers__sliding_block__glu_gated_bilinear__prompt.s")
    ap.add_argument("--stop", type=int, default=None)
    ap.add_argument("--stamps", action="store_true")
    ap.add_argument("--safe", action="store_true")
    ap.add_argument("--fallback", action="store_true")
    args = ap.parse_args()
    g = Gen(args.stop, args.stamps, args.safe, args.fallback)
    txt = g.build()
    open(args.o, "w").write(txt)
    print(f"wrote {args.o}: {len(txt)} bytes, {g.e.ninstr} instrs, {g.e.nops} nops", file=sys.stderr)
```

```python
from asmlib import v, a, s
from gen import *

MF = "v_mfma_f32_32x32x16_bf16"
S_BG = 64
S_RW = 66
S_WQW = 67
S_BQ = 58
NEG = "0xf149f2ca"


def lds_addr(off):
    if off < 57344:
        return v(V_O), off
    if off < 114688:
        return v(V_RHI), off - 57344
    return v(V_RH2), off - 114688


def wq_ops(g, vt):
    e = g.e

    def piece(p):
        def f():
            kk, sl = p // 3, p % 3
            if p == 0:
                e(f"v_lshrrev_b32 {v(vt)}, 2, {v(V_LANE)}")
                e(f"v_mul_u32_u24 {v(vt)}, 3072, {v(vt)}")
                e(f"v_and_b32 {v(vt + 1)}, 3, {v(V_LANE)}")
                e(f"v_lshl_add_u32 {v(vt)}, {v(vt + 1)}, 4, {v(vt)}")
                e(f"v_add_u32 {v(vt + 1)}, 1024, {v(vt)}")
                g.base(S_BQ, S_WQKV, 0, [(S_J, 64), (S_W, 8 * 49152)])
                e(f"s_lshl_b32 {s(S_WQW)}, {s(S_W)}, 13")
            elif sl == 0:
                g.bump(S_BQ, 49152)
            lds = L_WQ + kk * 1024 + (0, 32768 - 1024, 65536)[sl]
            e(f"s_add_u32 m0, {s(S_WQW)}, {lds}")
            g.wq_tok = e(f"global_load_lds_dwordx4 {v(vt + 1 if sl < 2 else vt)}, {s(S_BQ, 2)} offset:{1024 if sl == 1 else 0}")
        return f
    return [piece(p) for p in range(24)]


def wqf_ops(g):
    e = g.e

    def piece(p):
        def f():
            if p == 0:
                g.base(S_BQ, S_WS, WQ, [(S_J, 98304), (S_W, 24576)])
                e(f"s_mul_i32 {s(S_WQW)}, {s(S_W)}, 24576")
            if p % 4 == 0:
                e(f"s_add_u32 m0, {s(S_WQW)}, {L_WQ + (p >> 2) * 4096}")
            vo, imm = g.frag_addr(p)
            g.wq_tok = e(f"global_load_lds_dwordx4 {vo}, {s(S_BQ, 2)} offset:{imm}")
        return f
    return [piece(p) for p in range(24)]


def ring_setup(g):
    e = g.e
    g.base(S_BG, S_WS, WG, [(S_J, 229376), (S_W, 7168)])
    e(f"s_mul_i32 {s(S_RW)}, {s(S_W)}, 7168")


def ring_dma_ops(g, c):
    e = g.e
    ops = []

    def piece(p):
        def f():
            if p % 4 == 0:
                e(f"s_add_u32 m0, {s(S_RW)}, {L_RING + (c % 5) * 28672 + (p >> 2) * 4096}")
            vo, imm = g.frag_addr(p)
            tok = e(f"global_load_lds_dwordx4 {vo}, {s(S_BG, 2)} offset:{imm}")
            if p == 6:
                g.ring_tok[c] = tok
                g.bump(S_BG, 28672)
        return f
    return [piece(p) for p in range(7)]


def load_stats(g, nb, vdst):
    e = g.e
    g.cbase(B1, C_ST[nb], [(S_W, 4096)])
    for f in range(16):
        e(f"global_load_dword {v(vdst + f)}, {v(V_L4)}, {s(B1, 2)} offset:{f * 256}")


def stats_ops(g, vsrc, vr, vm):
    e = g.e
    I = []
    for st in (8, 4, 2):
        for f in range(0, st, 2):
            I.append(f"v_pk_add_f32 {v(vsrc + f, 2)}, {v(vsrc + f, 2)}, {v(vsrc + f + st, 2)}")
    I.append(f"v_add_f32 {v(vsrc)}, {v(vsrc)}, {v(vsrc + 1)}")
    I.append(f"v_mov_b32 {v(vsrc + 1)}, {v(vsrc)}")
    I.append(f"v_permlane32_swap_b32 {v(vsrc)}, {v(vsrc + 1)}")
    I.append(f"v_mul_f32 {v(vsrc)}, 0xbb000000, {v(vsrc)}")
    I.append(f"v_mul_f32 {v(vsrc + 1)}, 0x3b000000, {v(vsrc + 1)}")
    I.append(f"v_cvt_pk_bf16_f32 {v(vsrc + 2)}, {v(vsrc)}, {v(vsrc)}")
    I.append(f"v_fma_f32 {v(vsrc + 1)}, -{v(vsrc)}, {v(vsrc)}, {v(vsrc + 1)}")
    I.append(f"v_lshlrev_b32 {v(vsrc + 2)}, 16, {v(vsrc + 2)}")
    I.append(f"v_max_f32 {v(vsrc + 1)}, 0, {v(vsrc + 1)}")
    I.append(f"v_sub_f32 {v(vsrc + 2)}, {v(vsrc)}, {v(vsrc + 2)}")
    I.append(f"v_add_f32 {v(vsrc + 1)}, 0x3727c5ac, {v(vsrc + 1)}")
    I.append(f"v_cvt_pk_bf16_f32 {v(vm)}, {v(vsrc)}, {v(vsrc + 2)}")
    I.append(f"v_rsq_f32 {v(vr)}, {v(vsrc + 1)}")
    for q in range(1, 4):
        I.append(f"v_mov_b32 {v(vm + q)}, {v(vm)}")
    return [(lambda t=t: e(t)) for t in I]


def take(lst, n):
    for _ in range(n):
        if lst:
            lst.pop(0)()


def phaseQ(g, L):
    e = g.e
    opt = g.opt
    AK, AV, AQ = 32, 48, 64
    WB = 80
    VKA, VNEG = 104, 105
    VST = 112
    VR, VRQ = 128, 130
    VRT = 132
    KF, VF, QF = 148, 156, 164
    SB = [32, 48]
    PB = [64, 72]
    OA = [176, 192]
    KB = [80, 84]
    VB = [88, 96]
    CD, CZM, CO, CZL = 208, 224, 240, 112
    VVA = [172, 173]
    VV0, VVS = 174, 175
    PR = 108
    CSK, CSV, CSQ, VM = 176, 180, 184, 188
    nb = 0 if L == 0 else 2
    LA = 8

    def csloads():
        g.base(B2, S_WS, WCSQ, [(S_J, 3072)])
        for q in range(3):
            e(f"global_load_dwordx4 {v(CSK + 4 * q, 4)}, {v(V_O)}, {s(B2, 2)} offset:{q * 1024}")

    def xloads(n):
        load_stats(g, nb, VST)
        for k in range(n):
            g.load_frag(a(4 * k, 4), B0, k)
    ones = V_T + 4
    tn, th, tu = V_T, V_T + 1, V_T + 2

    def write_ones():
        e(f"ds_write_b128 {v(V_T + 3)}, {v(ones, 4)}")
        e(f"ds_write_b128 {v(V_T + 3)}, {v(ones, 4)} offset:1024")

    def setup():
        e(f"v_and_b32 {v(tn)}, 31, {v(V_LANE)}")
        e(f"v_lshrrev_b32 {v(th)}, 5, {v(V_LANE)}")
        e(f"v_mov_b32 {v(VNEG)}, {NEG}")
        e(f"v_lshlrev_b32 {v(tu)}, 2, {v(th)}")
        e(f"v_sub_u32 {v(tu)}, {v(tn)}, {v(tu)}")
        if L == 0:
            e(f"v_bfe_u32 {v(V_TR0)}, {v(V_LANE)}, 2, 2")
            e(f"v_lshl_add_u32 {v(V_TR0)}, {v(th)}, 2, {v(V_TR0)}")
            e(f"v_lshlrev_b32 {v(V_TR0)}, 6, {v(V_TR0)}")
            e(f"v_bfe_u32 {v(V_TR1)}, {v(V_LANE)}, 4, 1")
            e(f"v_lshl_add_u32 {v(V_TR0)}, {v(V_TR1)}, 5, {v(V_TR0)}")
            e(f"v_and_b32 {v(V_TR1)}, 3, {v(V_LANE)}")
            e(f"v_lshl_add_u32 {v(V_TR0)}, {v(V_TR1)}, 3, {v(V_TR0)}")
            e(f"v_add_u32 {v(V_TR1)}, 65536, {v(V_TR0)}")
        e(f"s_cmp_ge_u32 {s(S_I)}, 1")
        e(f"s_cselect_b32 {s(T0)}, 0, {NEG}")
        for r in range(16):
            kk = 8 * (r >> 2) + (r & 3)
            e(f"v_cmp_gt_i32 vcc, {kk}, {v(tu)}")
            e(f"v_cndmask_b32 {v(CD + r)}, 0, {v(VNEG)}, vcc")
            e(f"v_mov_b32 {v(CZM + r)}, {s(T0)}")
            e(f"v_sub_f32 {v(CO + r)}, {v(VNEG)}, {v(CD + r)}")
        lab = e.newlabel("oldok")
        e(f"s_cmp_ge_u32 {s(S_I)}, 2")
        e.branch("s_cbranch_scc1", lab)
        for r in range(16):
            e(f"v_mov_b32 {v(CO + r)}, {v(VNEG)}")
        e.label(lab)
        for r in range(4):
            e(f"v_mov_b32 {v(ones + r)}, 0x3f803f80")
        e(f"v_add_u32 {v(V_T + 3)}, {L_ONES}, {v(V_O)}")
        if L == 0:
            write_ones()
        e(f"s_and_b32 {s(S_H)}, {s(S_W)}, 1")
        e(f"s_lshr_b32 {s(S_A)}, {s(S_W)}, 1")
        e(f"s_sub_u32 {s(S_B)}, 3, {s(S_A)}")
        e(f"s_lshl_b32 {s(T0)}, {s(S_H)}, 10")
        e(f"s_add_u32 {s(T0)}, {s(T0)}, {L_KV}")
        e(f"v_add_u32 {v(VKA)}, {s(T0)}, {v(V_O)}")
        t0, t1, t2 = V_T + 10, V_T + 8, V_T + 9
        e(f"v_and_b32 {v(t0)}, 15, {v(tn)}")
        e(f"v_subrev_u32 {v(t0)}, 4, {v(t0)}")
        e(f"v_cmp_gt_u32 vcc, 8, {v(t0)}")
        e(f"v_mov_b32 {v(t1)}, 64")
        e(f"v_cndmask_b32 {v(t1)}, 0, {v(t1)}, vcc")
        e(f"v_add_u32 {v(t1)}, {L_ONES}, {v(t1)}")
        e(f"s_lshl_b32 {s(T0)}, {s(S_H)}, 8")
        e(f"s_add_u32 {s(T0)}, {s(T0)}, {L_KV + 2048}")
        e(f"v_add_u32 {v(t2)}, {s(T0)}, {v(V_O)}")
        e(f"v_mov_b32 {v(t0)}, 4096")
        e(f"v_cmp_gt_u32 vcc, 16, {v(tn)}")
        e(f"v_cndmask_b32 {v(VV0)}, {v(t1)}, {v(t2)}, vcc")
        e(f"v_cndmask_b32 {v(VVS)}, 0, {v(t0)}, vcc")
        ring_setup(g)
        g.cbase(B0, C_X[nb], [(S_W, 32768)])

    def rdw(k, slot, dst):
        if L == 1:
            va, imm = lds_addr(L_WQ + k * 3072 + slot * 1024)
            e(f"ds_read_b128 {v(dst, 4)}, {va} offset:{imm}")
            return
        va, imm = (v(V_TR0), slot * 32768) if slot < 2 else (v(V_TR1), 0)
        for hf in range(2):
            e(f"ds_read_b64_tr_b16 {v(dst + 2 * hf, 2)}, {va} offset:{imm + k * 1024 + hf * 512}")

    if L == 0:
        g.prep(setup)
        g.stamp(f"Q{L} sync")
        LA = opt.get("la0", 32)
        xloads(LA)

        def resl():
            g.cbase(B2, C_X[0], [(S_TL, 32768), (S_CTF, 2048)])
            e(f"global_load_dwordx4 {v(V_RES, 4)}, {v(V_O)}, {s(B2, 2)}")
            e(f"global_load_dwordx4 {v(V_RES + 4, 4)}, {v(V_O)}, {s(B2, 2)} offset:1024")
        if LA == 32:
            resl()
        g.job_finish([64, 68, 72, 76, 192, 196, 200, 204], 148, ones)
        CA, CF_ = 32, 80
        CA2 = 48
        e(f"s_min_u32 {s(T0)}, {s(S_W)}, 2")
        e(f"s_lshl_b32 {s(T1)}, {s(T0)}, 15")
        e(f"v_add_u32 {v(V_T + 8)}, {s(T1)}, {v(V_TR0)}")

        def rdc(k):
            for hf in range(2):
                e(f"ds_read_b64_tr_b16 {v(CF_ + 4 * (k % 5) + 2 * hf, 2)}, {v(V_T + 8)} offset:{k * 1024 + hf * 512}")
        for k in range(4):
            rdc(k)
        for k in range(32):
            if k + 4 < 32:
                rdc(k + 4)
            ca = CA2 if k & 1 else CA
            e(f"{MF} {v(ca, 16)}, {v(ones, 4)}, {v(CF_ + 4 * (k % 5), 4)}, {v(ca, 16) if k > 1 else 0}")
        e(f"v_add_f32 {v(CA)}, {v(CA)}, {v(CA2)}")
        e(f"s_lshl_b32 {s(T1)}, {s(T0)}, 10")
        e(f"s_add_u32 {s(T1)}, {s(T1)}, {L_CS}")
        e(f"v_add_u32 {v(V_T + 9)}, {s(T1)}, {v(V_O)}")
        e(f"v_cmp_gt_u32 vcc, 32, {v(V_LANE)}")
        e(f"v_cvt_pk_bf16_f32 {v(CF_)}, {v(CA)}, {v(CA)}")
        e(f"v_lshlrev_b32 {v(CF_ + 1)}, 16, {v(CF_)}")
        e(f"v_sub_f32 {v(CF_ + 1)}, {v(CA)}, {v(CF_ + 1)}")
        e(f"v_cvt_pk_bf16_f32 {v(CF_ + 1)}, {v(CF_ + 1)}, {v(CF_ + 1)}")
        e(f"v_cndmask_b32 {v(CF_)}, 0, {v(CF_)}, vcc")
        e(f"v_cndmask_b32 {v(CF_ + 1)}, 0, {v(CF_ + 1)}, vcc")
        e(f"v_mov_b32 {v(CF_ + 2)}, 0")
        e(f"v_mov_b32 {v(CF_ + 3)}, 0")
        e(f"ds_write_b128 {v(V_T + 9)}, {v(CF_, 4)}")
        e.wait_lg_all()
        e("s_barrier")
        e(f"v_add_u32 {v(V_T + 9)}, {L_CS}, {v(V_O)}")
        for q in range(3):
            e(f"ds_read_b128 {v(CSK + 4 * q, 4)}, {v(V_T + 9)} offset:{q * 1024}")
        xl = [(lambda k=k: g.load_frag(a(4 * k, 4), B0, k)) for k in range(LA, 32)]
        if LA < 32:
            xl.append(resl)
    else:
        csloads()
        setup()
        g.await_cluster(3)
        g.stamp(f"Q{L} sync")
        xloads(LA)
        write_ones()
        xl = [(lambda k=k: g.load_frag(a(4 * k, 4), B0, k)) for k in range(LA, 32)]
    g.stamp(f"Q{L} W ready")

    JF = [64, 68, 72, 76, 192, 196, 200, 204]
    for k in range(2):
        rdw(k, 0, WB + 8 * k)
        rdw(k, 1, WB + 8 * k + 4)
    side = stats_ops(g, VST, VR, VM)
    side.append(lambda: e(f"v_mul_f32 {v(VRQ)}, 0x3eb8aa3b, {v(VR)}"))
    side.append(lambda: (e(f"s_lshl_b32 {s(T0)}, {s(S_W)}, 8"), e(f"s_add_u32 {s(T0)}, {s(T0)}, {L_RS}")))
    side.append(lambda: e(f"v_add_u32 {v(V_T + 3)}, {s(T0)}, {v(V_L4)}"))
    side.append(lambda: e(f"v_lshlrev_b32 {v(V_T + 8)}, 4, {v(th)}"))
    side.append(lambda: e(f"ds_write_b32 {v(V_T + 3)}, {v(VR)}"))
    side.append(lambda: e(f"v_add_u32 {v(V_T + 8)}, {s(T0)}, {v(V_T + 8)}"))
    for q in range(4):
        side.append(lambda q=q: e(f"ds_read_b128 {v(VRT + 4 * q, 4)}, {v(V_T + 8)} offset:{q * 32}"))
    for k in range(32):
        b, nbuf = WB + 8 * (k % 3), WB + 8 * ((k + 2) % 3)
        if k + 2 < 32:
            rdw(k + 2, 0, nbuf)
        e(f"{MF} {v(AK, 16)}, {v(b, 4)}, {a(4 * k, 4)}, {v(AK, 16) if k else 0}")
        take(xl, 1)
        if k >= 4:
            take(side, 1)
        if k + 2 < 32:
            rdw(k + 2, 1, nbuf + 4)
        e(f"{MF} {v(AV, 16)}, {a(4 * k, 4)}, {v(b + 4, 4)}, {v(AV, 16) if k else 0}")
        if k >= 4:
            take(side, 1)
    take(side, 99)
    assert not xl
    e(f"{MF} {v(AK, 16)}, {v(CSK, 4)}, {v(VM, 4)}, {v(AK, 16)}")
    e(f"{MF} {v(AV, 16)}, {v(VM, 4)}, {v(CSV, 4)}, {v(AV, 16)}")
    g.stamp(f"Q{L} kv gemm")
    for k in range(3):
        rdw(k, 2, WB + 4 * k)
    for r in range(0, 16, 2):
        e(f"v_pk_mul_f32 {v(AK + r, 2)}, {v(AK + r, 2)}, {v(VR, 2)} op_sel_hi:[1,0]")
    for r in range(8):
        e(f"v_cvt_pk_bf16_f32 {v(KF + r)}, {v(AK + 2 * r)}, {v(AK + 2 * r + 1)}")
    e(f"s_lshl_b32 {s(T0)}, {s(S_W)}, 12")
    e(f"s_add_u32 {s(T0)}, {s(T0)}, {L_KV + 8 * 4096}")
    e(f"v_add_u32 {v(V_T + 3)}, {s(T0)}, {v(V_O)}")
    g.cbase(B2, C_KV[L], [(S_W, 65536), (S_J, 4096)])
    for q in range(2):
        e(f"global_store_dwordx4 {v(V_O)}, {v(KF + 4 * q, 4)}, {s(B2, 2)} offset:{q * 1024} sc1")
        e(f"ds_write_b128 {v(V_T + 3)}, {v(KF + 4 * q, 4)} offset:{q * 1024}")
    for r in range(0, 16, 2):
        e(f"v_pk_mul_f32 {v(AV + r, 2)}, {v(AV + r, 2)}, {v(VRT + r, 2)}")
    for r in range(8):
        e(f"v_cvt_pk_bf16_f32 {v(VF + r)}, {v(AV + 2 * r)}, {v(AV + 2 * r + 1)}")
    kvtok = None
    for q in range(2):
        kvtok = e(f"global_store_dwordx4 {v(V_O)}, {v(VF + 4 * q, 4)}, {s(B2, 2)} offset:{2048 + q * 1024} sc1")
        e(f"ds_write_b128 {v(V_T + 3)}, {v(VF + 4 * q, 4)} offset:{2048 + q * 1024}")
    g.stamp(f"Q{L} kv stored")
    wo = [(lambda b=b, k=k: g.load_frag(a(128 + (b * 8 + k) * 4, 4), S_WOB[b], k)) for k in range(8) for b in range(2)]
    if L == 1:
        take(wo, opt.get("wo0", 10))
    g.base(B4, S_WS, HF + L * 4096, [(S_J, 256), (S_T, 4)])
    pre = []
    for q in range(2):
        def hal(q=q):
            e(f"s_lshl_b32 {s(T0)}, {s(S_W)}, 1")
            e(f"s_add_u32 {s(T0)}, {s(T0)}, {q}")
            e(f"s_lshl_b32 {s(T1)}, {s(S_I)}, 2")
            e(f"s_add_u32 {s(T2)}, {s(T1)}, {s(T0)}")
            e(f"s_sub_u32 {s(T2)}, {s(T2)}, 8")
            e(f"s_and_b32 {s(T0)}, {s(T0)}, 3")
            e(f"s_add_u32 {s(T1)}, {s(T1)}, {s(T0)}")
            e(f"s_cmp_lt_i32 {s(T2)}, 0")
            e(f"s_cselect_b32 {s(T4 + q)}, {s(T1)}, {s(T2)}")
            e(f"s_lshr_b32 {s(T1)}, {s(T4 + q)}, 2")
            e(f"s_and_b32 {s(T2)}, {s(T4 + q)}, 3")
            g.base(B2 + 2 * q, S_WS, CL0 + C_KV[L], [(T1, CLS), (T2, 65536), (S_J, 4096)])
        pre.append(hal)

    def pradr():
        e(f"s_lshl_b32 {s(T0)}, {s(T5)}, 2")
        e(f"s_lshl_b32 {s(T1)}, {s(T4)}, 2")
        e(f"v_mov_b32 {v(V_T + 2)}, {s(T0)}")
        e(f"v_mov_b32 {v(V_T + 3)}, {s(T1)}")
        e(f"v_cmp_eq_u32 vcc, 0, {v(V_LANE)}")
        e(f"v_cndmask_b32 {v(V_T + 3)}, {v(V_T + 2)}, {v(V_T + 3)}, vcc")
        e(f"s_cmp_ge_u32 {s(S_I)}, 2")
        e(f"s_cselect_b32 {s(T0)}, 0, {NEG}")
    pre.append(pradr)
    pre += [(lambda r=r: e(f"v_mov_b32 {v(CZL + r)}, {s(T0)}")) for r in range(16)]
    KFLAG = opt.get("kflag", 20)
    for k in range(32):
        if k + 3 < 32:
            rdw(k + 3, 2, WB + 4 * ((k + 3) & 3))
        e(f"{MF} {v(AQ, 16)}, {v(WB + 4 * (k & 3), 4)}, {a(4 * k, 4)}, {v(AQ, 16) if k else 0}")
        if k == KFLAG:
            e.wait_vm(kvtok)
            g.flag_store(B4, " sc1")
        elif k > KFLAG or k < 3:
            take(pre, 1 if k < 3 else 2)
    take(pre, 99)
    e(f"{MF} {v(AQ, 16)}, {v(CSQ, 4)}, {v(VM, 4)}, {v(AQ, 16)}")
    g.base(B4, S_WS, HF + L * 4096, [(S_J, 256)])
    NPR = 4

    def probe(c):
        e(f"global_load_dword {v(PR + c)}, {v(V_T + 3)}, {s(B4, 2)} sc1")
    probe(0)
    for r in range(0, 16, 2):
        e(f"v_pk_mul_f32 {v(AQ + r, 2)}, {v(AQ + r, 2)}, {v(VRQ, 2)} op_sel_hi:[1,0]")
    for r in range(8):
        e(f"v_cvt_pk_bf16_f32 {v(QF + r)}, {v(AQ + 2 * r)}, {v(AQ + 2 * r + 1)}")
    e(f"s_lshl_b32 {s(T0)}, {s(S_W)}, 11")
    e(f"s_add_u32 {s(T0)}, {s(T0)}, {L_Q}")
    e(f"v_add_u32 {v(V_T + 2)}, {s(T0)}, {v(V_O)}")
    for h in range(2):
        e(f"ds_write_b128 {v(V_T + 2)}, {v(QF + 4 * h, 4)} offset:{h * 1024}")
    e(f"s_lshl_b32 {s(T0)}, {s(S_A)}, 11")
    e(f"s_lshl_b32 {s(T1)}, {s(S_H)}, 10")
    e(f"s_add_u32 {s(T1)}, {s(T1)}, {L_Q}")
    e(f"s_add_u32 {s(T0)}, {s(T0)}, {s(T1)}")
    e(f"v_add_u32 {v(V_T + 2)}, {s(T0)}, {v(V_O)}")
    e(f"s_lshl_b32 {s(T0)}, {s(S_B)}, 11")
    e(f"s_add_u32 {s(T0)}, {s(T0)}, {s(T1)}")
    e(f"v_add_u32 {v(V_T + 8)}, {s(T0)}, {v(V_O)}")
    e(f"s_mov_b32 {s(S_HD)}, 0")
    e.wait_lg_all()
    e("s_barrier")
    g.stamp(f"Q{L} q done")
    e(f"ds_read_b128 {v(QF, 4)}, {v(V_T + 2)}")
    e(f"ds_read_b128 {v(QF + 4, 4)}, {v(V_T + 8)}")
    if L == 0:
        e.wait_lg_all()
        g.job_flags()
    probe(1)
    g.ring_tok = {}
    r_ = [op for c in range(3) for op in ring_dma_ops(g, c)]
    w_ = [(lambda b=b, k=k: g.load_frag(a(8 * k + 4 * b, 4), S_WD[b], k)) for k in range(16) for b in range(2)]
    stream = wo + r_ + w_

    def halo_dma(raw):
        for q in range(2):
            t = f"s_lshl_b32 {s(T0)}, {s(S_W)}, 13"
            e.raw("\t" + t) if raw else e(t)
            t = f"s_add_u32 m0, {s(T0)}, {L_KV + q * 4096}"
            e.raw("\t" + t) if raw else e(t)
            e.raw("\ts_nop 0")
            for p in range(4):
                e.raw(f"\tglobal_load_lds_dwordx4 {v(V_O)}, {s(B2 + 2 * q, 2)} offset:{p * 1024}")
        e.raw(f"\ts_mov_b32 {s(S_HD)}, 1")

    def checkpoint(c, nprobes):
        lab = e.newlabel("hchk")
        e.flush_haz()
        e.raw(f"\ts_cmp_eq_u32 {s(S_HD)}, 1")
        e.raw(f"\ts_cbranch_scc1 {lab}")
        e.raw(f"\ts_waitcnt vmcnt({nprobes - c - 1})")
        e.raw(f"\tv_cmp_ne_u32 vcc, {s(S_EPOCH)}, {v(PR + c)}")
        e.raw("\ts_nop 4")
        e.raw(f"\ts_cbranch_vccnz {lab}")
        halo_dma(True)
        e.raw(f"{lab}:")
        e.pos += 8

    def units(aa, bb):
        if aa == 0:
            own = [(1, 0), (0, 0), (1, 1), (1, 2), (1, 3)]
        else:
            own = [(1, 0), (0, 0), (1, 1), (0, 1), (1, 2)]
        tt = (aa, bb)
        rest = [[(u, d) for d in range(9) if (u, d) not in own] for u in range(2)]
        hal = []
        while rest[0] or rest[1]:
            for u in (0, 1):
                if rest[u]:
                    hal.append(rest[u].pop(0))
        assert len(hal) == 13
        return [(u, d, 8 + tt[u] - d) for (u, d) in own + hal]

    NOWN = 5
    sids = {}

    def vstamp(name):
        if name in sids:
            g.stamp(name, sids[name])
        else:
            sids[name] = g.nstamp
            g.stamp(name)

    def attention(aa, bb):
        U = units(aa, bb)

        def cblk(n):
            u, d, sg = U[n]
            if d == 0:
                return v(CD, 16)
            if d == 8:
                return v(CO, 16)
            return "0" if sg >= 8 else (v(CZM, 16) if sg >= 4 else v(CZL, 16))

        def rdk(n):
            e(f"ds_read_b128 {v(KB[n & 1], 4)}, {v(VKA)} offset:{U[n][2] * 4096}")

        def smf(n):
            e(f"{MF} {v(SB[n & 1], 16)}, {v(KB[n & 1], 4)}, {v(QF + 4 * U[n][0], 4)}, {cblk(n)}")
        seen = set()

        def pv(n, sp):
            u = U[n][0]
            first = u not in seen
            seen.add(u)
            e(f"{MF} {v(OA[u], 16)}, {v(VB[n & 1] + 4 * sp, 4)}, {v(PB[n & 1] + 4 * sp, 4)}, {0 if first else v(OA[u], 16)}")
        strm = list(stream)
        n0 = NOWN + (opt.get("pfw", 0) if L == 0 else opt.get("s0", 0))
        rate = opt.get("rate0", 5) if L == 0 else opt.get("rate1", 4)
        rdk(0)
        rdk(1)
        smf(0)
        for n in range(18):
            S = SB[n & 1]
            if n == NOWN:
                lab = e.newlabel("hfin")
                e.flush_haz()
                e.raw(f"\ts_cmp_eq_u32 {s(S_HD)}, 1")
                e.raw(f"\ts_cbranch_scc1 {lab}")
                st = e.save_cnt()
                g.poll(B4, v(V_T + 3))
                halo_dma(True)
                e.restore_cnt(st)
                e.raw(f"{lab}:")
                if L == 0:
                    e(f"s_lshr_b32 {s(T0)}, {s(S_J)}, 2")
                    g.base(B4, S_WS, PF, [(S_I, 1024), (T0, 256)])
                    e(f"global_load_dword {v(PR)}, {v(V_L4)}, {s(B4, 2)} sc1")
                e.wait_vm_all()
                e("s_barrier")
                vstamp(f"Q{L} halo landed")
                rdk(n)
                rdk(n + 1)
                smf(n)
                pv(n - 1, 0)
                pv(n - 1, 1)
            if L == 0 and n == n0:
                lab = e.newlabel("pfok")
                e.wait_vm_all()
                e(f"v_cmp_ne_u32 vcc, {s(S_EPOCH)}, {v(PR)}")
                e.flush_haz()
                e.raw(f"\ts_cbranch_vccz {lab}")
                st = e.save_cnt()
                g.poll(B4, v(V_L4))
                e.restore_cnt(st)
                e.raw(f"{lab}:")
                vstamp(f"Q{L} pf ok")
            nxt = n + 1 < 18 and n + 1 != NOWN
            if nxt:
                smf(n + 1)
            u, d, sg = U[n]
            e(f"v_mad_u32_u24 {v(VVA[n & 1])}, {v(VVS)}, {sg}, {v(VV0)}")
            for r in range(16):
                e(f"v_exp_f32 {v(S + r)}, {v(S + r)}")
                if r == 3:
                    if n >= 1 and n != NOWN:
                        pv(n - 1, 0)
                    if n + 2 < 18 and n + 2 != NOWN and n + 1 != NOWN:
                        rdk(n + 2)
                if r == 9:
                    for sp in range(2):
                        e(f"ds_read_b128 {v(VB[n & 1] + 4 * sp, 4)}, {v(VVA[n & 1])} offset:{sp * 1024}")
                    if n >= 1 and n != NOWN:
                        pv(n - 1, 1)
                if n >= n0 and r in ((1, 5, 11, 14) if rate == 4 else (1, 5, 8, 11, 14) if rate == 5 else (1, 3, 6, 8, 11, 14)):
                    take(strm, 1)
            for r in range(8):
                e(f"v_cvt_pk_bf16_f32 {v(PB[n & 1] + r)}, {v(S + 2 * r)}, {v(S + 2 * r + 1)}")
            if n < NOWN - 1:
                if n + 2 < NPR:
                    probe(n + 2)
                checkpoint(n, min(n + 3, NPR))
        pv(17, 0)
        pv(17, 1)
        return strm
    left = []
    rt0 = dict(g.ring_tok)
    ns0 = g.nstamp
    e(f"s_cmp_eq_u32 {s(S_A)}, 0")

    def var(aa, bb):
        def f():
            left[:] = attention(aa, bb)
        return f
    e.either("s_cbranch_scc0", var(1, 2), var(0, 3))
    g.leftover = left
    g.stamp(f"Q{L} attn")
    LR = [OA[0] + 8, OA[1] + 8]
    fb, norm = f"L_fallback_{L}", f"L_norm_{L}"
    e(f"v_min_f32 {v(V_T + 3)}, {v(LR[0])}, {v(LR[1])}")
    e(f"v_max_f32 {v(V_T + 4)}, {v(LR[0])}, {v(LR[1])}")
    e(f"v_cmp_o_f32 vcc, {v(LR[0])}, {v(LR[1])}")
    e(f"s_mov_b64 {s(S_M1, 2)}, vcc")
    e(f"v_cmp_le_f32 vcc, 0x21800000, {v(V_T + 3)}")
    e(f"s_and_b64 {s(S_M1, 2)}, {s(S_M1, 2)}, vcc")
    e(f"v_cmp_ge_f32 vcc, 0x5d800000, {v(V_T + 4)}")
    e(f"s_and_b64 {s(S_M1, 2)}, {s(S_M1, 2)}, vcc")
    e(f"s_cmp_eq_u64 {s(S_M1, 2)}, exec")
    if g.force_fallback:
        e.branch("s_branch", fb)
    else:
        e.branch("s_cbranch_scc0", fb)
    e.flush_haz()
    e.raw(f"{norm}:")
    e.snaps.pop(fb, None)
    VRL = V_T + 4
    g.cbase(B2, C_OB[L], [(S_A, 32768), (S_J, 2048), (S_H, 1024)])
    g.cbase(B3, C_OB[L], [(S_B, 32768), (S_J, 2048), (S_H, 1024)])
    OF = KF
    for u in range(2):
        ob = OA[u]
        e(f"v_rcp_f32 {v(VRL)}, {v(LR[u])}")
        for r in range(0, 8, 2):
            e(f"v_pk_mul_f32 {v(ob + r, 2)}, {v(ob + r, 2)}, {v(VRL, 2)} op_sel_hi:[1,0]")
        for r in range(4):
            e(f"v_cvt_pk_bf16_f32 {v(OF + 4 * u + r)}, {v(ob + 2 * r)}, {v(ob + 2 * r + 1)}")
        e(f"global_store_dwordx4 {v(V_O)}, {v(OF + 4 * u, 4)}, {s(B2 + 2 * u, 2)} sc1")
    g.signal(4 * L + 0)
    g.stamp(f"Q{L} signalled")
    g.deferred.append(lambda: fallback(g, L, fb, norm, QF, OA, CD, CO, VKA, VV0, VVS, VNEG, SB, PB, KB, VB))


def fallback(g, L, fb, norm, QF, OA, CD, CO, VKA, VV0, VVS, VNEG, SB, PB, KB, VB):
    e = g.e
    e.hist = []
    e.pend = {}
    e.raw(f"{fb}:")
    e.flush_haz()
    e.nop(12)
    e.wait_lg_all()
    S, P, K, V = SB[0], PB[0], KB[0], VB[0]
    VM, VA2, VV2 = SB[1], SB[1] + 2, SB[1] + 3

    def tile(u, c, pas):
        e(f"ds_read_b128 {v(K, 4)}, {v(VA2)}")
        if pas:
            for sp in range(2):
                e(f"ds_read_b128 {v(V + 4 * sp, 4)}, {v(VV2)} offset:{sp * 1024}")
        e(f"{MF} {v(S, 16)}, {v(K, 4)}, {v(QF + 4 * u, 4)}, {c}")
        if not pas:
            for r in range(0, 16, 2):
                e(f"v_max3_f32 {v(VM)}, {v(VM)}, {v(S + r)}, {v(S + r + 1)}")
        else:
            for r in range(16):
                e(f"v_sub_f32 {v(S + r)}, {v(S + r)}, {v(VM)}")
            for r in range(16):
                e(f"v_exp_f32 {v(S + r)}, {v(S + r)}")
            for r in range(8):
                e(f"v_cvt_pk_bf16_f32 {v(P + r)}, {v(S + 2 * r)}, {v(S + 2 * r + 1)}")
            for sp in range(2):
                e(f"{MF} {v(OA[u], 16)}, {v(V + 4 * sp, 4)}, {v(P + 4 * sp, 4)}, {v(OA[u], 16)}")
            e(f"v_sub_u32 {v(VV2)}, {v(VV2)}, {v(VVS)}")
        e(f"v_subrev_u32 {v(VA2)}, 4096, {v(VA2)}")

    for u in range(2):
        su = (S_A, S_B)[u]
        e(f"s_lshl_b32 {s(T2)}, {s(S_I)}, 2")
        e(f"s_add_u32 {s(T2)}, {s(T2)}, {s(su)}")
        e(f"s_min_u32 {s(T0)}, {s(T2)}, 7")
        e(f"s_add_u32 {s(T3)}, {s(su)}, 8")
        e(f"s_lshl_b32 {s(T4)}, {s(T3)}, 12")
        for pas in range(2):
            e(f"v_add_u32 {v(VA2)}, {s(T4)}, {v(VKA)}")
            if pas == 0:
                e(f"v_mov_b32 {v(VM)}, {v(VNEG)}")
            else:
                e(f"v_mul_u32_u24 {v(VV2)}, {s(T3)}, {v(VVS)}")
                e(f"v_add_u32 {v(VV2)}, {v(VV2)}, {v(VV0)}")
                for r in range(16):
                    e(f"v_mov_b32 {v(OA[u] + r)}, 0")
            tile(u, v(CD, 16), pas)
            lp, done = e.newlabel("fbl"), e.newlabel("fbd")
            e(f"s_mov_b32 {s(T1)}, 0")
            e.loop_label(lp)
            e(f"s_cmp_ge_u32 {s(T1)}, {s(T0)}")
            e.branch("s_cbranch_scc1", done)
            tile(u, "0", pas)
            e(f"s_add_u32 {s(T1)}, {s(T1)}, 1")
            e.wait_lg_all()
            e.back_branch("s_branch", lp)
            e.label(done)
            e.flush_haz()
            e.nop(12)
            lab = e.newlabel("fbo")
            e(f"s_cmp_lt_u32 {s(T2)}, 8")
            e.branch("s_cbranch_scc1", lab)
            tile(u, v(CO, 16), pas)
            e.wait_lg_all()
            e.label(lab)
            e.flush_haz()
            e.nop(12)
            if pas == 0:
                e(f"v_mov_b32 {v(VM + 1)}, {v(VM)}")
                e(f"v_permlane32_swap_b32 {v(VM)}, {v(VM + 1)}")
                e(f"v_max_f32 {v(VM)}, {v(VM)}, {v(VM + 1)}")
    e.flush_haz()
    e.nop(12)
    e.raw(f"\ts_branch {norm}")


def gemm64_finish(g, L, kind):
    e = g.e
    ACC, TMP = 32, 96
    for sl in range(1, 4):
        e(f"s_xor_b32 {s(T0)}, {s(S_W)}, {sl}")
        e(f"s_mul_i32 {s(T0)}, {s(T0)}, 12288")
        e(f"s_add_u32 {s(T0)}, {s(T0)}, {L_RED + (sl - 1) * 4096}")
        e(f"v_add_u32 {v(V_T + sl)}, {s(T0)}, {v(V_O)}")
    for sl in range(1, 4):
        for q in range(4):
            e(f"ds_write_b128 {v(V_T + sl)}, {v(ACC + 16 * sl + 4 * q, 4)} offset:{q * 1024}")
    e(f"s_mul_i32 {s(T0)}, {s(S_W)}, 12288")
    e(f"s_add_u32 {s(T0)}, {s(T0)}, {L_RED}")
    e(f"v_add_u32 {v(V_T)}, {s(T0)}, {v(V_O)}")
    e.wait_lg_all()
    e("s_barrier")
    for sl in range(3):
        for q in range(4):
            e(f"ds_read_b128 {v(TMP + 16 * sl + 4 * q, 4)}, {v(V_T)} offset:{sl * 4096 + q * 1024}")
    for sl in range(3):
        for r in range(0, 16, 2):
            e(f"v_pk_add_f32 {v(ACC + r, 2)}, {v(ACC + r, 2)}, {v(TMP + 16 * sl + r, 2)}")
    final = (kind == "D" and L == 1)
    for r in range(8):
        e(f"v_cvt_pk_bf16_f32 {v(V_RES + r)}, {v(ACC + 2 * r)}, {v(ACC + 2 * r + 1)}")
    if final:
        for sp in range(2):
            e(f"v_permlane32_swap_b32 {v(V_RES + 4 * sp)}, {v(V_RES + 4 * sp + 2)}")
            e(f"v_permlane32_swap_b32 {v(V_RES + 4 * sp + 1)}, {v(V_RES + 4 * sp + 3)}")
        e(f"v_and_b32 {v(V_T)}, 31, {v(V_LANE)}")
        e(f"v_lshlrev_b32 {v(V_T)}, 10, {v(V_T)}")
        e(f"v_lshrrev_b32 {v(V_T + 1)}, 5, {v(V_LANE)}")
        e(f"v_lshl_add_u32 {v(V_T)}, {v(V_T + 1)}, 4, {v(V_T)}")
        g.base(B2, S_OUT, 0, [(S_TF, 32768), (S_CTF, 64)])
        for sp in range(2):
            e(f"global_store_dwordx4 {v(V_T)}, {v(V_RES + 4 * sp, 4)}, {s(B2, 2)} offset:{sp * 32}")
        return
    nb = (1 if kind == "O" else 2) + 2 * L
    g.cbase(B2, C_X[nb], [(S_TL, 32768), (S_CTF, 2048)])
    g.cbase(B3, C_ST[nb], [(S_TL, 4096), (S_CTF, 256)])
    sm, sq = TMP, TMP + 2
    e(f"v_pk_add_f32 {v(sm, 2)}, {v(ACC, 2)}, {v(ACC + 2, 2)}")
    e(f"v_pk_mul_f32 {v(sq, 2)}, {v(ACC, 2)}, {v(ACC, 2)}")
    for r in range(2, 16, 2):
        if r > 2:
            e(f"v_pk_add_f32 {v(sm, 2)}, {v(sm, 2)}, {v(ACC + r, 2)}")
        e(f"v_pk_fma_f32 {v(sq, 2)}, {v(ACC + r, 2)}, {v(ACC + r, 2)}, {v(sq, 2)}")
    e(f"v_add_f32 {v(sm)}, {v(sm)}, {v(sm + 1)}")
    e(f"v_add_f32 {v(sq)}, {v(sq)}, {v(sq + 1)}")
    e(f"v_permlane32_swap_b32 {v(sm)}, {v(sq)}")
    e(f"v_add_f32 {v(sm)}, {v(sm)}, {v(sq)}")

    def st(sc):
        for sp in range(2):
            e(f"global_store_dwordx4 {v(V_O)}, {v(V_RES + 4 * sp, 4)}, {s(B2, 2)} offset:{sp * 1024}{sc}")
        e(f"global_store_dword {v(V_L4)}, {v(sm)}, {s(B3, 2)}{sc}")
    g.store_data(st)
    g.signal(4 * L + (1 if kind == "O" else 3))


def init_acc_from_res(g):
    e = g.e
    for d in range(8):
        e(f"v_lshlrev_b32 {v(32 + 2 * d)}, 16, {v(V_RES + d)}")
        e(f"v_and_b32 {v(32 + 2 * d + 1)}, 0xffff0000, {v(V_RES + d)}")


def phaseO(g, L):
    e = g.e
    init_acc_from_res(g)
    for aa in range(2):
        e(f"s_xor_b32 {s(T0)}, {s(S_TL)}, {aa}")
        g.cbase(B0 + 2 * aa, C_OB[L], [(T0, 32768), (S_W, 8192)])
    g.await_cluster(4 * L + 0)
    g.stamp(f"O{L} sync")
    LA = 4

    def ldo(k):
        for aa in range(2):
            g.load_frag(a(192 + (aa * 8 + k) * 4, 4), B0 + 2 * aa, k)
    for k in range(LA):
        ldo(k)
    if L == 0:
        g.publish_epoch()
    left = g.leftover
    nw = min(len(left), 32)
    assert len(left) - nw <= 21
    lw = left[len(left) - nw:]
    now = g.opt.get("owd", 7)
    ring = left[:len(left) - nw] + ring_dma_ops(g, 3) + lw[:now]
    g.leftover = lw[now:]
    for k in range(8):
        for b in range(2):
            for aa in range(2):
                sl = aa + 2 * b
                acc = v(32 + 16 * sl, 16)
                c = acc if (k or sl == 0) else "0"
                e(f"{MF} {acc}, {a(128 + (b * 8 + k) * 4, 4)}, {a(192 + (aa * 8 + k) * 4, 4)}, {c}")
                if sl == 0 and k + LA < 8:
                    ldo(k + LA)
                if k + LA >= 8:
                    take(ring, 1)
    take(ring, 99)
    g.stamp(f"O{L} gemm")
    gemm64_finish(g, L, "O")
    g.stamp(f"O{L} signalled")


def phaseG(g, L):
    e = g.e
    ACC, WB, VST, VR = 32, 144, 200, 216
    CS, VM = 218, 246
    XA = 128
    nb = 1 + 2 * L
    g.cbase(B0, C_X[nb], [(S_W, 32768)])
    g.base(B2, S_WS, WCSG, [(S_J, 7168)])
    g.await_cluster(4 * L + 1)
    g.stamp(f"G{L} sync")
    LA = 6
    for k in range(3):
        g.load_frag(a(XA + 4 * k, 4), B0, k)
    load_stats(g, nb, VST)
    for k in range(3, LA):
        g.load_frag(a(XA + 4 * k, 4), B0, k)

    def rdw(k, t):
        off = L_RING + ((k >> 2) % 5) * 28672 + (k & 3) * 7168 + t * 1024
        va, imm = lds_addr(off)
        e(f"ds_read_b128 {v(WB + 28 * (k & 1) + 4 * t, 4)}, {va} offset:{imm}")

    for t in range(7):
        rdw(0, t)
    fill = ring_dma_ops(g, 4)
    side = stats_ops(g, VST, VR, VM)
    side.append(lambda: e(f"v_mul_f32 {v(VR)}, {v(VR)}, {v(VR)}"))
    wd = list(g.leftover)
    g.leftover = []
    cs = [(lambda t=t: g.load_frag(v(CS + 4 * t, 4), B2, t)) for t in range(7)]
    for k in range(32):
        c = k >> 2
        if (k & 3) == 3 and c + 1 < 8:
            if c + 1 >= 4:
                e.wait_vm(g.ring_tok[c + 1])
                e("s_barrier")
            elif c >= 1:
                e("s_barrier")
            if c >= 1 and c + 4 < 8:
                assert not fill
                fill = ring_dma_ops(g, c + 4)
        if k >= 2 and k % 2 == 0 and k <= 24:
            m = (k - 2) // 2
            wd += [(lambda b=b, m=m: g.load_frag(a(8 * (16 + m) + 4 * b, 4), S_WD[b], 16 + m)) for b in range(2)]
        xl = [(lambda kk=k + LA: g.load_frag(a(XA + 4 * kk, 4), B0, kk))] if k + LA < 32 else []
        for t in range(7):
            e(f"{MF} {v(ACC + 16 * t, 16)}, {v(WB + 28 * (k & 1) + 4 * t, 4)}, {a(XA + 4 * k, 4)}, {v(ACC + 16 * t, 16) if k else 0}")
            if k + 1 < 32:
                rdw(k + 1, t)
            if t in (0, 2, 4) or (t == 6 and len(wd) > 2):
                for q in (xl, fill, cs if k >= 19 else [], wd):
                    if q:
                        take(q, 1)
                        break
            if t in (1, 3, 5) and k >= 4:
                take(side, 1)
            if L == 0 and t == 6 and k == g.opt.get("ktq", -1):
                tt = V_T
                e(f"s_and_b32 {s(T0)}, {s(S_I)}, 1")
                g.base(B1, S_WQKV, 0, [(T0, 64 * 12288), (S_J, 4 * 12288), (S_W, 12288)])
                e(f"v_lshlrev_b32 {v(tt)}, 7, {v(V_LANE)}")
                e(f"v_and_b32 {v(tt + 1)}, 31, {v(V_LANE)}")
                e(f"v_lshlrev_b32 {v(tt + 1)}, 7, {v(tt + 1)}")
                e(f"v_add_u32 {v(tt + 1)}, 8192, {v(tt + 1)}")
                e(f"global_load_dword {v(tt + 2)}, {v(tt)}, {s(B1, 2)}")
                e(f"global_load_dword {v(tt + 3)}, {v(tt + 1)}, {s(B1, 2)}")
    assert not wd and not cs
    assert not fill and not side
    g.stamp(f"G{L} gemm")
    g.cbase(B0, C_HB[L], [(S_W, 114688), (S_J, 7168)])
    HF_ = WB

    def epi(t):
        A = ACC + 16 * t
        for r in range(0, 8, 2):
            e(f"v_pk_mul_f32 {v(A + r, 2)}, {v(A + r, 2)}, {v(A + 8 + r, 2)}")
        for r in range(0, 8, 2):
            e(f"v_pk_mul_f32 {v(A + r, 2)}, {v(A + r, 2)}, {v(VR, 2)} op_sel_hi:[1,0]")
        for r in range(4):
            e(f"v_cvt_pk_bf16_f32 {v(HF_ + 4 * t + r)}, {v(A + 2 * r)}, {v(A + 2 * r + 1)}")
    for t in range(7):
        e(f"{MF} {v(ACC + 16 * t, 16)}, {v(CS + 4 * t, 4)}, {v(VM, 4)}, {v(ACC + 16 * t, 16)}")
        if t >= 2:
            epi(t - 2)
    epi(5)
    epi(6)

    def st(sc):
        for t in range(7):
            vo, imm = g.frag_addr(t)
            e(f"global_store_dwordx4 {vo}, {v(HF_ + 4 * t, 4)}, {s(B0, 2)} offset:{imm}{sc}")
    g.store_data(st)
    g.signal(4 * L + 2)
    g.stamp(f"G{L} signalled")


def phaseD(g, L):
    e = g.e
    HR, NS, LA = 96, 20, 5
    init_acc_from_res(g)
    for aa in range(2):
        e(f"s_xor_b32 {s(T0)}, {s(S_TL)}, {aa}")
        g.cbase(B0 + 2 * aa, C_HB[L], [(T0, 114688), (S_W, 28672)])
    g.await_cluster(4 * L + 2)
    g.stamp(f"D{L} sync")

    def hreg(k, aa):
        return v(HR + (k % NS) * 8 + 4 * aa, 4)

    def ldh(k):
        for aa in range(2):
            g.load_frag(hreg(k, aa), B0 + 2 * aa, k)
    for k in range(LA):
        ldh(k)
    wq = wqf_ops(g) if L == 0 else []
    for k in range(28):
        for b in range(2):
            for aa in range(2):
                sl = aa + 2 * b
                acc = v(32 + 16 * sl, 16)
                c = acc if (k or sl == 0) else "0"
                e(f"{MF} {acc}, {a(8 * k + 4 * b, 4)}, {hreg(k, aa)}, {c}")
                if k + LA < 28 and sl in (0, 2):
                    g.load_frag(hreg(k + LA, sl >> 1), B0 + 2 * (sl >> 1), k + LA)
                if k >= 4 and sl == 3:
                    take(wq, 1)
    assert not wq
    g.stamp(f"D{L} gemm")
    gemm64_finish(g, L, "D")
    g.stamp(f"D{L} signalled")
```

```python
import sys, os
sys.path.insert(0, os.path.dirname(os.path.abspath(__file__)))
from asmlib import Emitter, v, a, s

KNAME = "interleave_layers__sliding_block__glu_gated_bilinear__prompt_kernel"

EW = 0x0
XF = 0x1000
CF = 0x3000
HF = 0xB000
PF = 0x10000
XF2 = 0x3000000
CF2 = 0x3010000
HF2 = 0x3080000
PF2 = 0x3100000
STAMP = 0x20000
WCSQ = 0xA0000
WCSG = 0xB0000
WCS2 = 0x3200000
WQ = 0x100000
WO = 0x280000
WG = 0x300000
WD = 0x680000
CL0 = 0x900000
CLS = 0x240000
C_X = [0x0, 0x20000, 0x40000, 0x60000]
C_ST = [0x80000, 0x84000, 0x88000, 0x8C000]
C_OB = [0x90000, 0xB0000]
C_KV = [0xD0000, 0x110000]
C_HB = [0x150000, 0x1C0000]

L_WQ = 0
L_KV = 96 * 1024
L_ONES = 144 * 1024
L_RS = L_ONES + 2048
L_CS = 148 * 1024
L_Q = 152 * 1024
L_RING = 0
L_RED = 112 * 1024
L_PREP = 96 * 1024
LDS_BYTES = 160 * 1024

S_X, S_WQKV, S_WO, S_GATE, S_UP, S_DOWN, S_OUT, S_DBG, S_WS = 4, 6, 8, 10, 12, 14, 16, 18, 20
S_I, S_J, S_W, S_MODE, S_DEAD, S_T, S_TF, S_CTF = 22, 23, 24, 25, 26, 27, 28, 29
B0, B1, B2, B3, B4 = 30, 32, 34, 36, 38
T0, T1, T2, T3, T4, T5, T6, T7 = 40, 41, 42, 43, 44, 45, 46, 47
S_R = 48
S_SPIN = 49
S_XCC = 50
S_EPOCH = 51
S_TL = 70
S_WD = (72, 74)
S_WOB = (76, 78)
S_JD, S_JC, S_JSTR, S_JTYP, S_JHAS, S_JNO, S_JS = 88, 90, 92, 93, 94, 95, 96
S_A, S_B, S_HD, S_H = 60, 61, 62, 63
S_M1, S_M2 = 52, 54
U0, U1, U2, U3, U4, U5, U6, U7 = 80, 81, 82, 83, 84, 85, 86, 87

V_LANE, V_L4 = 0, 1
V_O = 2
V_RES = 10
V_RHI = 18
V_RH2 = 19
V_T = 20
V_TR0, V_TR1, V_JR = 106, 107, 109

SPIN_LIMIT = 400000


class Gen:
    def __init__(self, stop_after=None, stamps=False, force_safe=False, force_fallback=False, opt=None):
        self.e = Emitter()
        self.opt = opt or {}
        self.stop_after = stop_after
        self.stamps = stamps
        self.force_safe = force_safe
        self.force_fallback = force_fallback
        self.nstamp = 0
        self.deferred = []

    def base(self, pair, ptr, const=0, terms=()):
        e = self.e
        have = False
        for (sr, mul) in terms:
            dst = T7 if have else T6
            if mul == 1:
                e(f"s_mov_b32 {s(dst)}, {s(sr)}")
            elif mul & (mul - 1) == 0:
                e(f"s_lshl_b32 {s(dst)}, {s(sr)}, {mul.bit_length() - 1}")
            else:
                e(f"s_mul_i32 {s(dst)}, {s(sr)}, {mul}")
            if have:
                e(f"s_add_u32 {s(T6)}, {s(T6)}, {s(T7)}")
            have = True
        if have and const:
            e(f"s_add_u32 {s(T6)}, {s(T6)}, {const}")
        if have:
            e(f"s_add_u32 {s(pair)}, {s(ptr)}, {s(T6)}")
        else:
            e(f"s_add_u32 {s(pair)}, {s(ptr)}, {const}")
        e(f"s_addc_u32 {s(pair + 1)}, {s(ptr + 1)}, 0")

    def cbase(self, pair, off, terms=()):
        self.base(pair, S_WS, CL0 + off, [(S_I, CLS)] + list(terms))

    def bump(self, pair, const):
        e = self.e
        e(f"s_add_u32 {s(pair)}, {s(pair)}, {const}")
        e(f"s_addc_u32 {s(pair + 1)}, {s(pair + 1)}, 0")

    def frag_addr(self, n):
        return v(V_O + (n >> 2)), (n & 3) * 1024

    def load_frag(self, dst, pair, n, extra=""):
        vo, imm = self.frag_addr(n)
        return self.e(f"global_load_dwordx4 {dst}, {vo}, {s(pair, 2)} offset:{imm}{extra}")

    def store_data(self, emit):
        emit(" sc1")

    def store_modal(self, emit):
        e = self.e
        if self.force_safe:
            emit(" sc1")
            return
        e(f"s_cmp_eq_u32 {s(S_MODE)}, 1")
        e.either("s_cbranch_scc1", lambda: emit(""), lambda: emit(" sc1"))

    def stamp(self, name, idx=None):
        if not self.stamps:
            return
        e = self.e
        if idx is None:
            n = self.nstamp
            self.nstamp += 1
        else:
            n = idx
        e(f"s_mov_b64 {s(S_M2, 2)}, exec")
        e.raw(f"\ts_memrealtime {s(S_M1, 2)}")
        e.raw(f"\ts_memtime {s(68, 2)}")
        e.raw("\ts_waitcnt lgkmcnt(0)")
        e.lg_done = e.lg_n
        e(f"s_lshl_b32 {s(T6)}, {s(S_R)}, 2")
        e(f"s_add_u32 {s(T6)}, {s(T6)}, {s(S_W)}")
        e(f"s_lshl_b32 {s(T6)}, {s(T6)}, 9")
        e(f"v_mov_b32 {v(V_T + 11)}, {s(T6)}")
        e(f"v_mov_b32 {v(252)}, {s(S_M1)}") if False else None
        e(f"v_mov_b32 {v(V_T + 10)}, {s(S_M1)}")
        e(f"s_mov_b64 exec, 1")
        e(f"global_store_dword {v(V_T + 11)}, {v(V_T + 10)}, {s(56, 2)} offset:{n * 8}")
        e(f"v_mov_b32 {v(V_T + 10)}, {s(68)}")
        e(f"global_store_dword {v(V_T + 11)}, {v(V_T + 10)}, {s(56, 2)} offset:{n * 8 + 4}")
        e(f"s_mov_b64 exec, {s(S_M2, 2)}")
        print(f"stamp {n}: {name}", file=sys.stderr)

    def spin(self, body, pre=None):
        e = self.e
        lp, out = e.newlabel("poll"), e.newlabel("pollout")
        e(f"s_mov_b32 {s(S_SPIN)}, 0")
        if pre:
            pre()
        e.loop_label(lp)
        body()
        e.raw(f"\ts_cbranch_vccz {out}")
        e.raw(f"\ts_add_u32 {s(S_SPIN)}, {s(S_SPIN)}, 1")
        e.raw(f"\ts_cmp_ge_u32 {s(S_SPIN)}, {s(S_DEAD)}")
        e.raw(f"\ts_cbranch_scc0 {lp}")
        e.raw(f"\ts_mov_b32 {s(S_DEAD)}, 1")
        e.raw(f"{out}:")
        e.vm_done = e.vm_n
        e.pos += 8
        e.hist = []

    def poll(self, pair, voff, lowmask=False):
        e = self.e
        vt = V_T + 8

        def body():
            e.raw(f"\tglobal_load_dword {v(vt)}, {voff}, {s(pair, 2)} sc1")
            e.raw("\ts_waitcnt vmcnt(0)")
            if lowmask:
                e.raw(f"\tv_and_b32 {v(vt + 1)}, -16, {v(vt)}")
                e.raw(f"\tv_cmp_ne_u32 vcc, {s(S_EPOCH)}, {v(vt + 1)}")
            else:
                e.raw(f"\tv_cmp_ne_u32 vcc, {s(S_EPOCH)}, {v(vt)}")
            e.raw("\ts_nop 4")
        self.spin(body)

    def flag_store(self, pair, sc, val=None):
        e = self.e
        e(f"v_mov_b32 {v(V_T + 8)}, {s(S_EPOCH if val is None else val)}")
        e(f"v_mov_b32 {v(V_T + 9)}, 0")
        e("s_mov_b64 exec, 1")
        if sc is None:
            self.store_modal(lambda m: e(f"global_store_dword {v(V_T + 9)}, {v(V_T + 8)}, {s(pair, 2)}{m}"))
        else:
            e(f"global_store_dword {v(V_T + 9)}, {v(V_T + 8)}, {s(pair, 2)}{sc}")
        e("s_mov_b64 exec, -1")

    def signal(self, phase):
        e = self.e
        if self.opt.get("cf"):
            self.base(B4, S_WS, CF2 + phase * 32768, [(S_I, 2048), (S_J, 128), (S_W, 4)])
        else:
            self.base(B4, S_WS, CF + phase * 4096, [(S_I, 256), (S_J, 16), (S_W, 4)])
        e.wait_all()
        self.flag_store(B4, None)

    def spread_addr(self):
        e = self.e
        t = V_T + 11
        e(f"v_lshrrev_b32 {v(t)}, 2, {v(V_LANE)}")
        e(f"v_lshlrev_b32 {v(t)}, 7, {v(t)}")
        e(f"v_and_b32 {v(t - 1)}, 12, {v(V_L4)}")
        e(f"v_or_b32 {v(t)}, {v(t)}, {v(t - 1)}")
        return v(t)

    def await_cluster(self, phase):
        if self.opt.get("cf"):
            self.base(B4, S_WS, CF2 + phase * 32768, [(S_I, 2048)])
            self.poll(B4, self.spread_addr())
            return
        self.base(B4, S_WS, CF + phase * 4096, [(S_I, 256)])
        self.poll(B4, v(V_L4))

    def init(self):
        e = self.e
        e("s_cmp_ge_u32 s2, 256")
        e.branch("s_cbranch_scc1", "L_exit")
        for ptr, off in ((S_X, 0), (S_WQKV, 8), (S_WO, 16), (S_GATE, 32), (S_UP, 40), (S_DOWN, 48),
                         (S_OUT, 56), (S_DBG, 64), (S_WS, 72)):
            e(f"s_load_dwordx2 {s(ptr, 2)}, s[0:1], {off}")
        e(f"v_lshrrev_b32 {v(V_T)}, 6, v0")
        e(f"v_and_b32 {v(V_LANE)}, 63, v0")
        e(f"v_readfirstlane_b32 {s(S_W)}, {v(V_T)}")
        e(f"v_lshlrev_b32 {v(V_L4)}, 2, {v(V_LANE)}")
        e(f"v_lshlrev_b32 {v(V_O)}, 4, {v(V_LANE)}")
        for n in range(1, 8):
            e(f"v_add_u32 {v(V_O + n)}, {n * 4096}, {v(V_O)}")
        e(f"v_add_u32 {v(V_RHI)}, 57344, {v(V_O)}")
        e(f"v_add_u32 {v(V_RH2)}, 114688, {v(V_O)}")
        e(f"s_and_b32 {s(T0)}, s2, 7")
        e(f"s_lshr_b32 {s(T1)}, s2, 3")
        e(f"s_and_b32 {s(S_J)}, {s(T1)}, 15")
        e(f"s_lshr_b32 {s(T1)}, {s(T1)}, 4")
        e(f"s_lshl_b32 {s(T0)}, {s(T0)}, 1")
        e(f"s_add_u32 {s(S_I)}, {s(T0)}, {s(T1)}")
        e(f"s_lshl_b32 {s(S_R)}, {s(S_I)}, 4")
        e(f"s_add_u32 {s(S_R)}, {s(S_R)}, {s(S_J)}")
        e(f"s_lshl_b32 {s(S_T)}, {s(S_I)}, 2")
        e(f"s_add_u32 {s(S_T)}, {s(S_T)}, {s(S_W)}")
        e(f"s_and_b32 {s(T0)}, {s(S_J)}, 1")
        e(f"s_lshl_b32 {s(T0)}, {s(T0)}, 1")
        e(f"s_and_b32 {s(T1)}, {s(S_W)}, 1")
        e(f"s_add_u32 {s(T0)}, {s(T0)}, {s(T1)}")
        e(f"s_lshl_b32 {s(S_TF)}, {s(S_I)}, 2")
        e(f"s_add_u32 {s(S_TF)}, {s(S_TF)}, {s(T0)}")
        e(f"s_lshr_b32 {s(T0)}, {s(S_J)}, 1")
        e(f"s_lshl_b32 {s(T0)}, {s(T0)}, 1")
        e(f"s_lshr_b32 {s(T1)}, {s(S_W)}, 1")
        e(f"s_add_u32 {s(S_CTF)}, {s(T0)}, {s(T1)}")
        e(f"s_mov_b32 {s(S_DEAD)}, {SPIN_LIMIT}")
        e(f"s_getreg_b32 {s(S_XCC)}, hwreg(HW_REG_XCC_ID, 0, 4)")
        e.wait_lg_all()
        if self.stamps:
            self.base(56, S_WS, STAMP)
        e(f"s_and_b32 {s(S_TL)}, {s(S_TF)}, 3")
        e(f"v_mov_b32 {v(V_T)}, {EW}")
        e(f"global_load_dword {v(250)}, {v(V_T)}, {s(S_WS, 2)} sc1")


    def only_if_zero(self, sreg, body):
        e = self.e
        lab = e.newlabel("skip")
        e.flush_haz()
        st = e.save_cnt()
        e(f"s_cmp_lg_u32 {s(sreg)}, 0")
        e.branch("s_cbranch_scc1", lab)
        body()
        e.flush_haz()
        e.snaps.pop(lab, None)
        e.raw(f"{lab}:")
        e.restore_cnt(st)

    def raw_store_flag(self, pair, voff, vval, execmask):
        e = self.e
        e.raw(f"\ts_mov_b64 exec, {execmask}")
        e.raw(f"\tglobal_store_dword {voff}, {vval}, {s(pair, 2)} sc1")
        e.raw("\ts_mov_b64 exec, -1")

    def xpiece_finish(self, VX):
        e = self.e
        lo, hi, sm, sq = V_T + 4, V_T + 5, V_T + 6, V_T + 7
        for r in range(8):
            e(f"v_lshlrev_b32 {v(lo)}, 16, {v(VX + r)}")
            e(f"v_and_b32 {v(hi)}, 0xffff0000, {v(VX + r)}")
            if r == 0:
                e(f"v_add_f32 {v(sm)}, {v(lo)}, {v(hi)}")
                e(f"v_mul_f32 {v(sq)}, {v(lo)}, {v(lo)}")
            else:
                e(f"v_add_f32 {v(sm)}, {v(sm)}, {v(lo)}")
                e(f"v_fmac_f32 {v(sq)}, {v(lo)}, {v(lo)}")
                e(f"v_add_f32 {v(sm)}, {v(sm)}, {v(hi)}")
            e(f"v_fmac_f32 {v(sq)}, {v(hi)}, {v(hi)}")
        e(f"v_permlane32_swap_b32 {v(sm)}, {v(sq)}")
        for sp in range(2):
            e(f"v_permlane32_swap_b32 {v(VX + 4 * sp)}, {v(VX + 4 * sp + 2)}")
            e(f"v_permlane32_swap_b32 {v(VX + 4 * sp + 1)}, {v(VX + 4 * sp + 3)}")
        e(f"v_add_f32 {v(sm)}, {v(sm)}, {v(sq)}")
        self.cbase(B3, C_X[0], [(S_W, 32768), (S_J, 2048)])
        self.cbase(B4, C_ST[0], [(S_W, 4096), (S_J, 256)])
        e(f"global_store_dwordx4 {v(V_O)}, {v(VX, 4)}, {s(B3, 2)} sc1")
        e(f"global_store_dwordx4 {v(V_O)}, {v(VX + 4, 4)}, {s(B3, 2)} offset:1024 sc1")
        return e(f"global_store_dword {v(V_L4)}, {v(sm)}, {s(B4, 2)} sc1")

    def xflag(self, xtok):
        e = self.e
        if self.opt.get("xf"):
            self.base(B3, S_WS, XF2, [(S_I, 2048), (S_J, 128), (S_W, 4)])
        else:
            self.base(B3, S_WS, XF, [(S_I, 256), (S_J, 16), (S_W, 4)])
        e(f"s_or_b32 {s(T0)}, {s(S_EPOCH)}, {s(S_XCC)}")
        e.wait_vm(xtok)
        self.flag_store(B3, " sc1", T0)

    def tiny(self):
        return self.e(f"global_load_dword {v(V_T + 11)}, {v(V_L4)}, {s(S_X, 2)}")

    def prep(self, setup):
        from phases import wq_ops
        e = self.e
        VX = 32
        VA = 40
        VC = 48
        tn, th = V_T + 2, V_T + 3
        e(f"v_and_b32 {v(tn)}, 31, {v(V_LANE)}")
        e(f"v_lshrrev_b32 {v(th)}, 5, {v(V_LANE)}")
        e(f"v_lshlrev_b32 {v(V_T + 4)}, 10, {v(tn)}")
        e(f"v_lshl_add_u32 {v(V_T + 4)}, {v(th)}, 4, {v(V_T + 4)}")
        self.base(B0, S_X, 0, [(S_T, 32768), (S_J, 64)])
        e(f"global_load_dwordx4 {v(VX, 4)}, {v(V_T + 4)}, {s(B0, 2)}")
        e(f"global_load_dwordx4 {v(VX + 4, 4)}, {v(V_T + 4)}, {s(B0, 2)} offset:32")
        SG, J = U0, U1
        STR = U2
        e(f"s_and_b32 {s(SG)}, {s(S_R)}, 63")
        e(f"s_lshr_b32 {s(J)}, {s(S_R)}, 6")
        lg, lo_, lgo, lq = [e.newlabel(x) for x in ("jg", "jo", "jgo", "jq")]
        e(f"s_mov_b32 {s(STR)}, 1024")
        e(f"s_mov_b32 {s(S_JSTR)}, 1024")
        e(f"s_mov_b32 {s(S_JTYP)}, 0")
        e(f"s_mov_b32 {s(S_JHAS)}, 0")
        e(f"s_mov_b32 {s(S_JNO)}, 1")
        self.base(S_JS, S_WO, 0)
        self.base(S_JD, S_WS, WO)
        self.base(S_JC, S_WS, WCSG)
        e(f"s_cmp_ge_u32 {s(SG)}, 58")
        e.branch("s_cbranch_scc1", lgo)
        e(f"s_mov_b32 {s(S_JNO)}, 0")
        e(f"s_lshl_b32 {s(T0)}, {s(J)}, 2")
        e(f"s_add_u32 {s(T0)}, {s(T0)}, {s(S_W)}")
        e(f"s_cmp_lt_u32 {s(SG)}, 12")
        e.branch("s_cbranch_scc1", lq)
        e(f"s_cmp_lt_u32 {s(SG)}, 40")
        e.branch("s_cbranch_scc1", lg)
        e(f"s_cmp_lt_u32 {s(SG)}, 44")
        e.branch("s_cbranch_scc1", lo_)
        e(f"s_sub_u32 {s(T1)}, {s(SG)}, 44")
        self.base(S_JS, S_DOWN, 0, [(T1, 131072), (J, 256)])
        self.base(S_JD, S_WS, WD, [(T0, 114688), (T1, 8192)])
        e.branch("s_branch", lgo)
        e.hist = []
        e.label(lo_)
        e(f"s_sub_u32 {s(T1)}, {s(SG)}, 40")
        self.base(S_JS, S_WO, 0, [(T1, 131072), (J, 256)])
        self.base(S_JD, S_WS, WO, [(T0, 32768), (T1, 8192)])
        e.branch("s_branch", lgo)
        e.hist = []
        e.label(lq)
        e(f"s_mov_b32 {s(STR)}, 3072")
        e(f"s_mov_b32 {s(S_JSTR)}, 3072")
        e(f"s_mov_b32 {s(S_JHAS)}, 1")
        e(f"s_lshr_b32 {s(T1)}, {s(SG)}, 2")
        e(f"s_and_b32 {s(T2)}, {s(SG)}, 3")
        self.base(S_JS, S_WQKV, 0, [(T2, 128 * 3072), (T1, 1024), (J, 256)])
        e(f"s_add_u32 {s(T3)}, {s(T1)}, 2")
        e(f"s_cmp_ge_u32 {s(T3)}, 3")
        e(f"s_cselect_b32 {s(T4)}, 3, 0")
        e(f"s_sub_u32 {s(T3)}, {s(T3)}, {s(T4)}")
        self.base(S_JD, S_WS, WQ, [(T0, 98304), (T2, 8 * 3072), (T3, 1024)])
        e(f"s_lshr_b32 {s(T4)}, {s(T2)}, 1")
        e(f"s_and_b32 {s(T5)}, {s(T2)}, 1")
        self.base(S_JC, S_WS, WCSQ, [(T0, 3072), (T3, 1024), (T4, 512), (T5, 8)])
        e.branch("s_branch", lgo)
        e.hist = []
        e.label(lg)
        e(f"s_mov_b32 {s(STR)}, 3584")
        e(f"s_mov_b32 {s(S_JSTR)}, 7168")
        e(f"s_mov_b32 {s(S_JTYP)}, 1")
        e(f"s_mov_b32 {s(S_JHAS)}, 1")
        e(f"s_sub_u32 {s(T1)}, {s(SG)}, 12")
        e(f"s_and_b32 {s(T2)}, {s(T1)}, 3")
        e(f"s_lshr_b32 {s(T1)}, {s(T1)}, 2")
        e(f"s_mul_i32 {s(T3)}, {s(J)}, 7")
        e(f"s_add_u32 {s(T1)}, {s(T1)}, {s(T3)}")
        lup, lud = e.newlabel("jup"), e.newlabel("jupd")
        e(f"s_cmp_ge_u32 {s(S_W)}, 2")
        e.branch("s_cbranch_scc1", lup)
        self.base(S_JS, S_GATE, 0, [(T2, 128 * 3584), (T1, 128)])
        e.branch("s_branch", lud)
        e.hist = []
        e.label(lup)
        self.base(S_JS, S_UP, 0, [(T2, 128 * 3584), (T1, 128)])
        e.label(lud)
        e(f"s_lshl_b32 {s(T3)}, {s(T1)}, 2")
        e(f"s_add_u32 {s(T3)}, {s(T3)}, {s(S_W)}")
        e(f"s_mul_i32 {s(T4)}, {s(T3)}, 9363")
        e(f"s_lshr_b32 {s(T4)}, {s(T4)}, 16")
        e(f"s_mul_i32 {s(T5)}, {s(T4)}, 7")
        e(f"s_sub_u32 {s(T5)}, {s(T3)}, {s(T5)}")
        self.base(S_JD, S_WS, WG, [(T4, 229376), (T2, 8 * 7168), (T5, 1024)])
        e(f"s_lshr_b32 {s(T4)}, {s(T2)}, 1")
        e(f"s_and_b32 {s(T5)}, {s(T2)}, 1")
        self.base(S_JC, S_WS, WCSG, [(T3, 1024), (T4, 512), (T5, 8)])
        e.label(lgo)
        ta, tb, tc = V_T + 5, V_T + 6, V_T + 7
        rr, cc, g1 = VC + 2, VC + 3, VC + 4
        e(f"v_and_b32 {v(rr)}, 15, {v(V_LANE)}")
        e(f"v_lshrrev_b32 {v(rr)}, 2, {v(rr)}")
        e(f"v_and_b32 {v(cc)}, 3, {v(V_LANE)}")
        e(f"v_lshlrev_b32 {v(cc)}, 3, {v(cc)}")
        e(f"v_bfe_u32 {v(g1)}, {v(V_LANE)}, 4, 1")
        e(f"v_lshl_add_u32 {v(VC + 5)}, {v(th)}, 2, {v(rr)}")
        la, lj = e.newlabel("tyA"), e.newlabel("tyJ")
        e(f"s_cmp_eq_u32 {s(S_JTYP)}, 0")
        e.branch("s_cbranch_scc1", la)
        e(f"s_and_b32 {s(T0)}, {s(S_W)}, 1")
        e(f"s_lshl_b32 {s(T0)}, {s(T0)}, 6")
        e(f"s_lshr_b32 {s(T1)}, {s(S_W)}, 1")
        e(f"s_lshl_b32 {s(T1)}, {s(T1)}, 1")
        e(f"v_lshrrev_b32 {v(ta)}, 3, {v(V_LANE)}")
        e(f"v_add_u32 {v(ta)}, {s(T0)}, {v(ta)}")
        e(f"v_mul_lo_u32 {v(ta)}, {v(ta)}, {s(STR)}")
        e(f"v_or_b32 {v(tb)}, {s(T1)}, {v(g1)}")
        e(f"v_lshlrev_b32 {v(tb)}, 1, {v(tb)}")
        e(f"v_and_b32 {v(tc)}, 7, {v(V_LANE)}")
        e(f"v_xor_b32 {v(tc)}, {v(tc)}, {v(tb)}")
        e(f"v_lshl_add_u32 {v(VA)}, {v(tc)}, 4, {v(ta)}")
        e(f"s_lshl_b32 {s(U6)}, {s(STR)}, 3")
        e(f"v_lshrrev_b32 {v(ta)}, 1, {v(rr)}")
        e(f"v_lshl_or_b32 {v(ta)}, {v(g1)}, 1, {v(ta)}")
        e(f"v_xor_b32 {v(ta)}, {s(S_W)}, {v(ta)}")
        e(f"v_lshlrev_b32 {v(ta)}, 5, {v(ta)}")
        e(f"v_lshl_add_u32 {v(ta)}, {v(VC + 5)}, 7, {v(ta)}")
        e(f"v_lshl_add_u32 {v(ta)}, {v(g1)}, 14, {v(ta)}")
        e(f"v_add_u32 {v(ta)}, {v(ta)}, {v(cc)}")
        e(f"v_add_u32 {v(V_JR)}, {L_PREP}, {v(ta)}")
        e.branch("s_branch", lj)
        e.hist = []
        e.label(la)
        e(f"s_lshl_b32 {s(T0)}, {s(S_W)}, 5")
        e(f"v_lshrrev_b32 {v(tb)}, 4, {v(V_LANE)}")
        e(f"v_add_u32 {v(ta)}, {s(T0)}, {v(tb)}")
        e(f"v_mul_lo_u32 {v(ta)}, {v(ta)}, {s(STR)}")
        e(f"v_lshlrev_b32 {v(tb)}, 2, {v(tb)}")
        e(f"v_and_b32 {v(tc)}, 15, {v(V_LANE)}")
        e(f"v_xor_b32 {v(tc)}, {v(tc)}, {v(tb)}")
        e(f"v_lshl_add_u32 {v(VA)}, {v(tc)}, 4, {v(ta)}")
        e(f"s_lshl_b32 {s(U6)}, {s(STR)}, 2")
        e(f"v_xor_b32 {v(ta)}, {s(S_W)}, {v(rr)}")
        e(f"v_lshlrev_b32 {v(ta)}, 6, {v(ta)}")
        e(f"v_lshl_add_u32 {v(ta)}, {v(VC + 5)}, 8, {v(ta)}")
        e(f"v_lshl_add_u32 {v(ta)}, {v(g1)}, 5, {v(ta)}")
        e(f"v_add_u32 {v(ta)}, {v(ta)}, {v(cc)}")
        e(f"v_add_u32 {v(V_JR)}, {L_PREP}, {v(ta)}")
        e.label(lj)
        e(f"s_lshl_b32 {s(U7)}, {s(S_W)}, 13")
        for p in range(1, 8):
            e(f"v_add_u32 {v(VA + p)}, {s(U6)}, {v(VA + p - 1)}")

        self.job_dma_regs = (VA, U7)
        tmode = self.opt.get("touch", 0)
        if tmode == 1:
            self.base(B1, S_WQKV, 0, [(S_R, 4 * 1536), (S_W, 1536)])
            e(f"v_min_u32 {v(VC)}, 11, {v(V_LANE)}")
            e(f"v_lshlrev_b32 {v(VC)}, 7, {v(VC)}")
            e(f"global_load_dword {v(VC + 6)}, {v(VC)}, {s(B1, 2)}")
        elif tmode == 2:
            e(f"s_and_b32 {s(T0)}, {s(S_I)}, 1")
            self.base(B1, S_WQKV, 0, [(T0, 64 * 12288), (S_J, 4 * 12288), (S_W, 12288)])
            e(f"v_lshlrev_b32 {v(VC)}, 7, {v(V_LANE)}")
            e(f"v_lshlrev_b32 {v(VC + 1)}, 7, {v(tn)}")
            e(f"v_add_u32 {v(VC + 1)}, 8192, {v(VC + 1)}")
            e(f"global_load_dword {v(VC + 6)}, {v(VC)}, {s(B1, 2)}")
            e(f"global_load_dword {v(VC + 7)}, {v(VC + 1)}, {s(B1, 2)}")
        e(f"v_readfirstlane_b32 {s(S_EPOCH)}, {v(250)}")
        e(f"s_and_b32 {s(S_EPOCH)}, {s(S_EPOCH)}, -16")
        e(f"s_add_u32 {s(S_EPOCH)}, {s(S_EPOCH)}, 16")
        xtok = self.xpiece_finish(VX)
        self.stamp("x piece", 60)
        self.jtok = self.job_dma()
        wq = wq_ops(self, V_T + 4)
        for _ in range(self.opt.get("wq1", 1)):
            wq.pop(0)()
        self.xflag(xtok)
        while wq:
            wq.pop(0)()
        for b in range(2):
            e(f"s_xor_b32 {s(T0)}, {s(S_CTF)}, {b}")
            self.base(S_WD[b], S_WS, WD, [(T0, 114688), (S_W, 28672)])
            self.base(S_WOB[b], S_WS, WO, [(T0, 32768), (S_W, 8192)])
        setup()
        e.wait_vm(self.wq_tok)
        e("s_barrier")
        self.stamp("W in", 61)
        self.job_reads([64, 68, 72, 76, 192, 196, 200, 204])
        self.base(B4, S_WS, XF, [(S_I, 256)])
        self.poll(B4, v(V_L4), lowmask=True)
        e(f"s_or_b32 {s(T0)}, {s(S_EPOCH)}, {s(S_XCC)}")
        e(f"v_cmp_ne_u32 vcc, {s(T0)}, {v(V_T + 8)}")
        e("s_cmp_eq_u64 vcc, 0")
        e(f"s_cselect_b32 {s(S_MODE)}, 1, 0")

    def job_touch(self):
        e = self.e
        VA, U7_ = self.job_dma_regs
        if not self.opt.get("jtouch", 1):
            return
        t = V_T + 10
        la, lj = e.newlabel("jtA"), e.newlabel("jtJ")
        e(f"s_cmp_eq_u32 {s(S_JTYP)}, 0")
        e.branch("s_cbranch_scc1", la)
        e(f"s_and_b32 {s(T0)}, {s(S_W)}, 1")
        e(f"s_lshl_b32 {s(T0)}, {s(T0)}, 6")
        e(f"v_add_u32 {v(t)}, {s(T0)}, {v(V_LANE)}")
        e(f"v_mul_lo_u32 {v(t)}, {v(t)}, {s(U2)}")
        e.branch("s_branch", lj)
        e.hist = []
        e.label(la)
        e(f"s_lshl_b32 {s(T0)}, {s(S_W)}, 5")
        e(f"v_lshrrev_b32 {v(t)}, 1, {v(V_LANE)}")
        e(f"v_add_u32 {v(t)}, {s(T0)}, {v(t)}")
        e(f"v_mul_lo_u32 {v(t)}, {v(t)}, {s(U2)}")
        e(f"v_and_b32 {v(t + 1)}, 1, {v(V_LANE)}")
        e(f"v_lshl_add_u32 {v(t)}, {v(t + 1)}, 7, {v(t)}")
        e.label(lj)
        e(f"global_load_dword {v(t + 1)}, {v(t)}, {s(S_JS, 2)}")

    def job_dma(self):
        e = self.e
        VA, U7_ = self.job_dma_regs

        def jdma():
            for p in range(8):
                e(f"s_add_u32 m0, {s(U7_)}, {L_PREP + p * 1024}")
                e(f"global_load_lds_dwordx4 {v(VA + p)}, {s(S_JS, 2)}")
        e(f"s_cmp_eq_u32 {s(S_JNO)}, 1")
        e.either("s_cbranch_scc1", lambda: [self.tiny() for _ in range(8)], jdma)
        return e.vm_n - 1

    def job_reads(self, VF):
        e = self.e

        def reads(ustep, hstep):
            def f():
                for u in range(8):
                    for hf in range(2):
                        e(f"ds_read_b64_tr_b16 {v(VF[u] + 2 * hf, 2)}, {v(V_JR)} offset:{u * ustep + hf * hstep}")
            return f
        e(f"s_cmp_eq_u32 {s(S_JTYP)}, 0")
        e.either("s_cbranch_scc1", reads(4096, 2048), reads(2048, 1024))

    def job_finish(self, VF, VS, VONE):
        e = self.e
        e.wait_lg_all()

        def stores():
            for u in range(8):
                e(f"global_store_dwordx4 {v(V_O)}, {v(VF[u], 4)}, {s(S_JD, 2)} sc1")
                if u < 7:
                    e(f"s_add_u32 {s(S_JD)}, {s(S_JD)}, {s(S_JSTR)}")
                    e(f"s_addc_u32 {s(S_JD + 1)}, {s(S_JD + 1)}, 0")
        e(f"s_cmp_eq_u32 {s(S_JNO)}, 1")
        e.either("s_cbranch_scc1", lambda: [self.tiny() for _ in range(8)], stores)

        def cs():
            st = e.save_cnt()
            for u in range(8):
                e(f"v_mfma_f32_32x32x16_bf16 {v(VS, 16)}, {v(VONE, 4)}, {v(VF[u], 4)}, {v(VS, 16) if u else 0}")
            e(f"v_cvt_pk_bf16_f32 {v(VS + 2)}, {v(VS)}, {v(VS)}")
            e(f"v_lshlrev_b32 {v(VS + 4)}, 16, {v(VS + 2)}")
            e(f"v_sub_f32 {v(VS + 4)}, {v(VS)}, {v(VS + 4)}")
            e(f"v_cvt_pk_bf16_f32 {v(VS + 3)}, {v(VS + 4)}, {v(VS + 4)}")
            e(f"v_and_b32 {v(VS + 5)}, 31, {v(V_LANE)}")
            e(f"v_lshlrev_b32 {v(VS + 5)}, 4, {v(VS + 5)}")
            e.flush_haz()
            e.raw("\ts_mov_b32 exec_hi, 0")
            e.raw(f"\tglobal_store_dwordx2 {v(VS + 5)}, {v(VS + 2, 2)}, {s(S_JC, 2)} sc1")
            e.raw("\ts_mov_b32 exec_hi, -1")
        e(f"s_xor_b32 {s(T0)}, {s(S_JHAS)}, 1")
        self.only_if_zero(T0, cs)

    def job_flags(self):
        e = self.e

        def pf():
            self.base(B1, S_WS, PF, [(S_R, 4)])
            e(f"v_lshlrev_b32 {v(V_T + 8)}, 10, {v(V_LANE)}")
            e(f"v_mov_b32 {v(V_T + 9)}, {s(S_EPOCH)}")
            e.flush_haz()
            self.raw_store_flag(B1, v(V_T + 8), v(V_T + 9), "0xffff")
            e.raw("\ts_nop 4")
        self.only_if_zero(S_W, pf)

    def await_jobs(self):
        e = self.e

        def body():
            e(f"s_lshr_b32 {s(T0)}, {s(S_J)}, 2")
            if self.opt.get("pf"):
                self.base(B4, S_WS, PF2, [(S_I, 32768), (T0, 8192)])
                e(f"v_lshlrev_b32 {v(V_T + 7)}, 7, {v(V_LANE)}")
                self.poll(B4, v(V_T + 7))
            else:
                self.base(B4, S_WS, PF, [(S_I, 1024), (T0, 256)])
                self.poll(B4, v(V_L4))
        self.only_if_zero(S_W, body)
        e("s_barrier")

    def publish_epoch(self):
        e = self.e
        e(f"s_or_b32 {s(T0)}, {s(S_R)}, {s(S_W)}")

        def body():
            e(f"v_mov_b32 {v(V_T + 8)}, {EW}")
            e(f"v_mov_b32 {v(V_T + 9)}, {s(S_EPOCH)}")
            self.raw_store_flag(S_WS, v(V_T + 8), v(V_T + 9), "1")
        self.only_if_zero(T0, body)

    def finish(self):
        e = self.e
        e.label("L_exit")
        e.raw("\ts_endpgm")
        for f in self.deferred:
            f()

    def build(self):
        from phases import phaseQ, phaseO, phaseG, phaseD
        g = self
        g.init()
        g.stamp("start")
        seq = []
        for L in range(2):
            seq += [("Q", L), ("O", L), ("G", L), ("D", L)]
        for n, (ph, L) in enumerate(seq):
            if self.stop_after is not None and n >= self.stop_after:
                break
            {"Q": phaseQ, "O": phaseO, "G": phaseG, "D": phaseD}[ph](g, L)
        g.e.wait_all()
        g.finish()
        return self.wrap(g.e.text())

    def wrap(self, body):
        hdr = f"""; Fused 2 x (sliding-window attention block + bilinear GLU block), one persistent launch.
; @launch grid=(256,1,1) block=(256,1,1) lds={LDS_BYTES}
.amdgcn_target "amdgcn-amd-amdhsa--gfx950"
.text
.globl {KNAME}
.p2align 8
.type {KNAME},@function
{KNAME}:
"""
        tail = f""".section .rodata,"a"
.p2align 6
.amdhsa_kernel {KNAME}
  .amdhsa_next_free_vgpr 512
  .amdhsa_next_free_sgpr 102
  .amdhsa_accum_offset 256
  .amdhsa_group_segment_fixed_size 0
  .amdhsa_kernarg_size 80
  .amdhsa_user_sgpr_count 2
  .amdhsa_user_sgpr_kernarg_segment_ptr 1
  .amdhsa_system_sgpr_workgroup_id_x 1
.end_amdhsa_kernel
"""
        return hdr + body + tail


if __name__ == "__main__":
    import argparse
    ap = argparse.ArgumentParser()
    ap.add_argument("-o", default="interleave_layers__sliding_block__glu_gated_bilinear__prompt.s")
    ap.add_argument("--stop", type=int, default=None)
    ap.add_argument("--stamps", action="store_true")
    ap.add_argument("--safe", action="store_true")
    ap.add_argument("--fallback", action="store_true")
    ap.add_argument("--opt", default="")
    args = ap.parse_args()
    opt = {}
    for kv in args.opt.split(","):
        if kv:
            k_, _, v_ = kv.partition("=")
            opt[k_] = int(v_) if v_ else 1
    g = Gen(args.stop, args.stamps, args.safe, args.fallback, opt)
    txt = g.build()
    open(args.o, "w").write(txt)
    print(f"wrote {args.o}: {len(txt)} bytes, {g.e.ninstr} instrs, {g.e.nops} nops", file=sys.stderr)
```
